```python
import torch

def _softmax(x, axis=-1):
    return torch.softmax(x, dim=axis)
def _gelu(x):
    return torch.nn.functional.gelu(x, approximate="tanh")
def _silu(x):
    return torch.nn.functional.silu(x)
def _sigmoid(x):
    return torch.sigmoid(x)
def _layernorm(x, axis=-1, eps=1e-5):
    m = x.mean(dim=axis, keepdim=True)
    v = x.var(dim=axis, keepdim=True, unbiased=False)
    return (x - m) / torch.sqrt(v + eps)
def _scatter_add(tgt, idx, src, axis=0):
    return tgt.clone().index_add_(axis, idx, src)
def _segment_sum(src, seg, n):
    out = torch.zeros((n,) + src.shape[1:], dtype=src.dtype)
    return out.index_add_(0, seg, src)
def _pad(x, pw):
    flat = tuple(v for pair in reversed(pw) for v in pair)
    return torch.nn.functional.pad(x, flat)

kernel_name = 'sequential_preLN__softmax_full_mha__dense_activation_silu__prompt'

def setup_inputs():

    _w = (lambda a: (lambda t: t.to(torch.bfloat16) if t.is_floating_point() else t)(torch.as_tensor(a)))
    def _A_setup():
        B, S, D = 1, 2048, 640
        return {
            "x": _w((lambda *s: torch.randn(*s, dtype=torch.bfloat16) * 0.05)(B, S, D)),
            "wqkv": _w((lambda *s: torch.randn(*s, dtype=torch.bfloat16) * 0.05)(D, 3 * D)),
            "wo": _w((lambda *s: torch.randn(*s, dtype=torch.bfloat16) * 0.05)(D, D)),
        }
    _A_in = _A_setup()

    def _B_setup():
        B, S, D, F = 1, 2048, 640, 1536
        return {
            "x": _w((lambda *s: torch.randn(*s, dtype=torch.bfloat16) * 0.05)(B, S, D)),
            "w1": _w((lambda *s: torch.randn(*s, dtype=torch.bfloat16) * 3.2)(D, F) * (D ** -0.5)),
            "w2": _w((lambda *s: torch.randn(*s, dtype=torch.bfloat16) * 0.2)(F, D) * (F ** -0.5)),
        }
    _B_in = _B_setup()

    return {
        "A_x": _A_in["x"],
        "A_wqkv": _A_in["wqkv"],
        "A_wo": _A_in["wo"],
        "B_x": _B_in["x"],
        "B_w1": _B_in["w1"],
        "B_w2": _B_in["w2"],
    }

def reference(A_x, A_wqkv, A_wo, B_x, B_w1, B_w2):
    def _A_ref(x, wqkv, wo):
        B, S, D = x.shape
        H = 32; Dh = D // H
        qkv = (lambda x, *d: x.permute(*d))((x @ wqkv).reshape(B, S, 3, H, Dh), 2, 0, 3, 1, 4)
        q, k, v = qkv[0], qkv[1], qkv[2]
        scale = Dh ** -0.5
        scores = torch.einsum("bhqd,bhkd->bhqk", q, k) * scale
        p = _softmax(scores, axis=-1)
        o = torch.einsum("bhqk,bhkd->bhqd", p, v)
        return (lambda x, *d: x.permute(*d))(o, 0, 2, 1, 3).reshape(B, S, D) @ wo

    def _B_ref(x, w1, w2):
        h = torch.einsum("bsd,df->bsf", x, w1)
        h = _silu(h)
        out = torch.einsum("bsf,fd->bsd", h, w2)
        return out

    x = A_x
    h = x + _A_ref(_layernorm(x, axis=-1), A_wqkv, A_wo)
    h2 = h + _B_ref(_layernorm(h, axis=-1), B_w1, B_w2)
    return h2
```

```python
import re
class Asm:
    def __init__(self):
        self.l = []
    def __call__(self, *lines):
        for s in lines:
            for t in s.split("\n"):
                t = t.strip()
                if t: self.l.append(t)
    def label(self, n): self.l.append(n + ":")
    def c(self, s): self.l.append("; " + s)
    def text(self):
        out = []
        for t in self.l:
            if t.endswith(":") or t.startswith(".") or t.startswith(";"): out.append(t)
            else: out.append("    " + t)
        return "\n".join(out) + "\n"
def vr(b, n=1, p="v"):
    return f"{p}{b}" if n == 1 else f"{p}[{b}:{b+n-1}]"
def sr(b, n=1): return vr(b, n, "s")
def ar(b, n=1): return vr(b, n, "a")

REG = re.compile(r"\b([vas])(\d+)\b|\b([vas])\[(\d+):(\d+)\]|\b(vcc|exec|m0|vcc_lo|vcc_hi|exec_lo|exec_hi|scc)\b")
def regs_of(op):
    s = set()
    for m in REG.finditer(op):
        if m.group(1): s.add((m.group(1), int(m.group(2))))
        elif m.group(3):
            for i in range(int(m.group(4)), int(m.group(5)) + 1): s.add((m.group(3), i))
        else:
            n = m.group(6)
            if n.startswith("vcc"): s.add(("vcc", 0))
            elif n.startswith("exec"): s.add(("exec", 0))
            else: s.add((n, 0))
    return s
TRANS = ("v_exp_", "v_log_", "v_rcp_", "v_rsq_", "v_sqrt_", "v_sin_", "v_cos_")
def parse(line):
    line = line.split(";")[0].strip()
    if not line or line.endswith(":") or line.startswith("."): return None
    p = line.split(None, 1)
    op = p[0]
    args = [a.strip() for a in p[1].split(",")] if len(p) > 1 else []
    d = dict(op=op, args=args, line=line)
    isv = op.startswith("v_")
    d["mfma"] = op.startswith("v_mfma")
    d["valu"] = isv and not d["mfma"]
    d["trans"] = op.startswith(TRANS)
    d["ds"] = op.startswith("ds_")
    d["vmem"] = op.startswith(("buffer_", "global_", "flat_"))
    d["salu"] = op.startswith("s_")
    defs, uses = set(), set()
    A = [regs_of(a) for a in args]
    if d["mfma"]:
        defs = A[0]; uses = A[1] | A[2] | A[3]
        d["srcc"] = A[3]; d["ab"] = A[1] | A[2]
        d["passes"] = 8 if "32x32" in op else 4
        if "32x32x4_2b" in op: d["passes"] = 16
    elif d["valu"]:
        if op.startswith("v_cmp"):
            defs = A[0]; uses = set().union(*A[1:]) if len(A) > 1 else set()
            if op.startswith("v_cmpx"): defs = defs | {("exec", 0)}
        elif op.startswith(("v_add_co", "v_addc_co", "v_sub_co", "v_subb_co", "v_subrev_co")):
            defs = A[0] | A[1]; uses = set().union(*A[2:])
        elif op.startswith("v_permlane") and "swap" in op:
            defs = A[0] | A[1]; uses = A[0] | A[1]
        elif op.startswith(("v_readfirstlane", "v_readlane")):
            defs = A[0]; uses = set().union(*A[1:])
        else:
            defs = A[0]; uses = set().union(*A[1:]) if len(A) > 1 else set()
            if op.startswith(("v_fmac", "v_dot2c", "v_pk_fmac", "v_writelane")) or "UNUSED_PRESERVE" in line: uses = uses | A[0]
            if op.startswith("v_cndmask") and len(A) == 3: uses = uses | {("vcc", 0)}
    elif d["ds"]:
        if op.startswith(("ds_read", "ds_bpermute", "ds_permute", "ds_swizzle")):
            defs = A[0]; uses = set().union(*A[1:]) if len(A) > 1 else set()
        else:
            uses = set().union(*A)
    elif d["vmem"]:
        if "load" in op and " lds" not in line:
            defs = A[0]; uses = set().union(*A[1:])
        elif "atomic" in op and "sc0" in line:
            uses = set().union(*A); defs = A[0]
        else:
            uses = set().union(*A)
        d["store"] = "store" in op
        d["dma"] = " lds" in line
        if d["store"]:
            d["data"] = A[0] if op.startswith("buffer_") else A[1]
            d["wide"] = ("x3" in op or "x4" in op)
    elif d["salu"]:
        if op.startswith(("s_cmp", "s_waitcnt", "s_barrier", "s_nop", "s_branch", "s_cbranch", "s_endpgm", "s_setprio", "s_sleep")):
            uses = set().union(*A) if A else set()
        else:
            defs = A[0] if A else set(); uses = set().union(*A[1:]) if len(A) > 1 else set()
            if "saveexec" in op: defs = defs | {("exec", 0)}
    d["defs"], d["uses"] = defs, uses
    d["ws"] = 1
    if op == "s_nop": d["ws"] = int(args[0], 0) + 1
    return d
def check_hazards(text, name="", window=24):
    ins = [x for x in (parse(l) for l in text.split("\n")) if x]
    probs = []
    for i, b in enumerate(ins):
        dist = 0
        for j in range(i - 1, max(-1, i - window - 1), -1):
            a = ins[j]
            def need(n, why):
                if dist < n: probs.append(f"{name}: [{why}: need {n} have {dist}]\n     {a['line']}\n  -> {b['line']}")
            vdefs = {r for r in a["defs"] if r[0] in "va" and r[0] != "vcc"}
            vdefs = {r for r in a["defs"] if r[0] in ("v", "a")}
            sdefs = {r for r in a["defs"] if r[0] in ("s", "vcc", "exec", "m0")}
            if a["valu"]:
                if b["mfma"] and vdefs & b["uses"]: need(2, "VALU->MFMA")
                if a["trans"] and b["valu"] and not b["trans"] and vdefs & b["uses"]: need(1, "trans->VALU")
                if a["trans"] and b["valu"] and b["trans"] and vdefs & b["uses"]: need(1, "trans->trans(cons)")
                if b["op"].startswith("v_permlane") and vdefs & b["uses"]: need(2, "VALU->permlane")
                if b["op"].startswith(("v_readfirstlane", "v_readlane")) and vdefs & b["uses"]: need(1, "VALU->readlane")
                if "dpp" in b["line"] and vdefs & b["uses"]: need(2, "VALU->DPP")
                sd = {r for r in sdefs if r[0] in ("s", "vcc")}
                if b["vmem"] and sd & b["uses"]: need(5, "VALU sgpr->VMEM")
                if b["valu"] and sd & b["uses"]: need(2, "VALU sgpr->VALU")
                if ("exec", 0) in sdefs and b["mfma"]: need(4, "VALU exec->MFMA")
            if a["mfma"]:
                P = a["passes"]
                n_rd = {4: 8, 8: 12, 16: 20}[P]; n_ov = {4: 6, 8: 10, 16: 18}[P]; n_war = {4: 3, 8: 7, 16: 15}[P]
                if b["mfma"]:
                    if a["defs"] & b["ab"]: need(n_rd, "MFMA D->MFMA A/B")
                    if a["defs"] & b["srcc"] and not (a["defs"] == b["srcc"] and a["passes"] == b["passes"]): need(n_ov, "MFMA D->MFMA C overlap")
                    if a["defs"] & b["defs"] and not (a["defs"] & b["srcc"]): need(n_ov, "MFMA D->MFMA D WAW(?)")
                elif b["valu"]:
                    if a["defs"] & (b["uses"] | b["defs"]): need(n_rd, "MFMA D->VALU")
                    if a["srcc"] & b["defs"]: need(n_war, "MFMA C WAR")
                elif b["ds"] or b["vmem"]:
                    if a["defs"] & (b["uses"] | b["defs"]): need(n_rd, "MFMA D->MEM")
            if a["salu"] and ("m0", 0) in a["defs"] and b["vmem"] and b.get("dma"): need(1, "M0->DMA")
            if a["vmem"] and a.get("store") and a.get("wide"):
                if b["valu"] and a["data"] & b["defs"]: need(2, "store WAR")
                elif a["data"] & b["defs"]: need(1, "store WAR")
            dist += a["ws"]
            if dist >= 21: break
    return probs
```

```python
import sys, importlib
from gen_common import *
def build(mods, out_path, header_extra=""):
    hdr = open("../cdna_kernels/" + PREFIX + ".s.ref").read().split("; Override launch")[0]
    launches, texts, descs = [], [], []
    for m in mods:
        a, d, l = m
        texts.append(a.text()); descs.append(d); launches.append(l)
        for p in check_hazards(a.text(), l[0]): print("HAZARD", p)
    s = hdr
    for (n, g, b, lds) in launches: s += f"; @launch kernel={n} grid=({g},1,1) block=({b},1,1) lds={lds}\n"
    s += '.amdgcn_target "amdgcn-amd-amdhsa--gfx950"\n.text\nall_code_begin:\n' + "\n".join(texts) + 'all_code_end:\n.fill 64, 4, 0xBF800000\n.section .rodata,"a"\n' + "".join(descs)
    open(out_path, "w").write(s)
    return launches
if __name__ == "__main__":
    import gen_k1
    build([gen_k1.gen()], "k1_only.s")
```

```python
from asmlib import *
import math
S, D, H, DH, F = 2048, 640, 32, 20, 1536
KV_OFF = 0
Q_OFF = 32 * 163840
O_OFF = Q_OFF + 32 * 81920
H_OFF = O_OFF + 32 * 81920
H1_OFF = H_OFF + 32 * 81920
WO_OFF = H1_OFF + 32 * 196608
W2_OFF = WO_OFF + 8 * 102400
W1_OFF = W2_OFF + 8 * 245760
ST_OFF = W1_OFF + 16 * 122880
WS_END = ST_OFF + 8 * 2048 * 8
QSCALE = (DH ** -0.5) * math.log2(math.e)
EPS = 1e-5
PREFIX = "sequential_preLN__softmax_full_mha__dense_activation_silu__prompt"
def f2u(x):
    import struct
    return struct.unpack("<I", struct.pack("<f", x))[0]
def fhex(x): return "0x%08x" % f2u(x)

def srd(a, base, lo, hi, off_sgpr, nrec):
    if off_sgpr is None:
        a(f"s_mov_b32 s{base}, s{lo}", f"s_and_b32 s{base+1}, s{hi}, 0xffff")
    else:
        a(f"s_add_u32 s{base}, s{lo}, {off_sgpr}", f"s_addc_u32 s{base+1}, s{hi}, 0", f"s_and_b32 s{base+1}, s{base+1}, 0xffff")
    a(f"s_mov_b32 s{base+2}, {nrec}", f"s_mov_b32 s{base+3}, 0x20000")

def kernel_header(a, name):
    a(f".globl {name}", ".p2align 8", f".type {name},@function")
    a.label(name)
def kernel_desc(name, vgpr, accum, sgpr=102):
    return "\n".join([".p2align 6", f".amdhsa_kernel {name}", f"  .amdhsa_next_free_vgpr {vgpr}", f"  .amdhsa_next_free_sgpr {sgpr}",
        f"  .amdhsa_accum_offset {accum}", "  .amdhsa_group_segment_fixed_size 0", "  .amdhsa_kernarg_size 72", "  .amdhsa_user_sgpr_count 2",
        "  .amdhsa_user_sgpr_kernarg_segment_ptr 1", "  .amdhsa_system_sgpr_workgroup_id_x 1", ".end_amdhsa_kernel"]) + "\n"

def csel(a, dst, x, y):
    a(f"s_mov_b32 {dst}, {y}", f"s_cselect_b32 {dst}, {x}, {dst}")

TS_OFF = 32 << 20
class Stamps:
    def __init__(self, kidx): self.k = kidx; self.n = 0
    def mark(self, a):
        if self.k is None: return
        a("s_memrealtime s[98:99]", "s_memtime s[96:97]", "s_waitcnt lgkmcnt(0)", f"s_mov_b32 s{68+self.n}, s98", f"s_mov_b32 s{76+self.n}, s96")
        self.n += 1
        assert self.n <= 8
    def flush(self, a, wave_sgpr, vtmp):
        if self.k is None: return
        self.mark(a)
        a("s_load_dwordx2 s[96:97], s[0:1], 64", "s_waitcnt lgkmcnt(0)")
        a(f"s_lshl_b32 s98, s2, 4", f"s_add_u32 s98, s98, s{wave_sgpr}", f"s_lshl_b32 s98, s98, 6", f"s_add_u32 s98, s98, {TS_OFF + self.k * 256 * 16 * 64}")
        a("s_mov_b64 exec, 1")
        for base, off in ((68, 0), (76, 32)):
            for i in range(8): a(f"v_mov_b32 v{vtmp+i}, s{base+i}" if i < self.n else f"v_mov_b32 v{vtmp+i}, 0")
            a(f"v_mov_b32 v{vtmp+8}, s98", f"global_store_dwordx4 v{vtmp+8}, v[{vtmp}:{vtmp+3}], s[96:97] offset:{off}", f"global_store_dwordx4 v{vtmp+8}, v[{vtmp+4}:{vtmp+7}], s[96:97] offset:{off+16}", "s_waitcnt vmcnt(0)")

class Q:
    def __init__(self, a, name, maxn): self.a, self.name, self.maxn, self.ops = a, name, maxn, []
    def issue(self, tag): self.ops.append(tag)
    def wait(self, *tags, emit=True):
        last = -1
        for i, t in enumerate(self.ops):
            if t in tags: last = i
        n = len(self.ops) - 1 - last
        if last < 0: return None
        n = min(n, self.maxn)
        if emit: self.a(f"s_waitcnt {self.name}({n})")
        self.ops = self.ops[last+1:] if n == len(self.ops) - 1 - last else self.ops[len(self.ops)-n:]
        return n
    def flush(self): self.ops = []

def emit_code_prefetch(a, lab_from, lab_to, s_idx, vlane, vt, st):
    u = f"cpf{len(a.l)}"
    a(f"s_getpc_b64 s[{st}:{st+1}]")
    a.label(f"{u}_pc")
    a(f"s_sub_u32 s{st}, s{st}, {u}_pc-{lab_from}", f"s_subb_u32 s{st+1}, s{st+1}, 0")
    a(f"s_lshl_b32 s{st+2}, s{s_idx}, 13", f"v_lshl_add_u32 v{vt}, v{vlane}, 7, s{st+2}", f"v_min_u32 v{vt}, {lab_to}-{lab_from}-4, v{vt}",
      f"global_load_dword v{vt+1}, v{vt}, s[{st}:{st+1}]")
```

```python
from gen_common import *
NAME = "k1_qkv_kernel"
NSLOT = 5
def gen(prefetch_code=None, stamp=None, abl=()):
    a = Asm(); st = Stamps(stamp)
    kernel_header(a, NAME); st.mark(a)
    sX, sW, sWS = 4, 6, 8
    SRX, SRW, SRO = 12, 16, 20
    sMT, sNT, sNTS, sSEC, sWV, sW4 = 24, 25, 26, 27, 28, 29
    sT0, sT1, sT2, sT3 = 30, 31, 32, 33
    sXso, sWso, sLX, sLW = 34, 35, 36, 37
    sMask, sBlkOff = 38, 39
    vLane, vN, vHh = 112, 113, 114
    vT = 116
    NV = 168
    SCR_CS, SCR_ST = 0, 1024
    a(f"s_cmp_ge_u32 s2, 256", f"s_cbranch_scc1 {NAME}_end")
    a(f"s_load_dwordx4 s[4:7], s[0:1], 0", f"s_load_dwordx2 s[8:9], s[0:1], 64")
    a(f"s_and_b32 s{sT0}, s2, 7", f"s_lshr_b32 s{sT1}, s2, 3",
      f"s_lshr_b32 s{sMT}, s{sT0}, 1", f"s_lshl_b32 s{sMT}, s{sMT}, 2", f"s_and_b32 s{sT2}, s{sT1}, 3", f"s_add_u32 s{sMT}, s{sMT}, s{sT2}",
      f"s_and_b32 s{sNT}, s{sT0}, 1", f"s_lshl_b32 s{sNT}, s{sNT}, 3", f"s_lshr_b32 s{sT2}, s{sT1}, 2", f"s_add_u32 s{sNT}, s{sNT}, s{sT2}",
      f"s_cmp_ge_u32 s{sNT}, 15", f"s_cbranch_scc1 {NAME}_end")
    a(f"v_lshrrev_b32 v{vT}, 6, v0", f"v_and_b32 v{vLane}, 63, v0")
    a(f"s_mul_i32 s{sSEC}, s{sNT}, 205", f"s_lshr_b32 s{sSEC}, s{sSEC}, 10")
    a(f"v_readfirstlane_b32 s{sWV}, v{vT}")
    a(f"s_mul_i32 s{sT2}, s{sSEC}, 5", f"s_sub_u32 s{sNTS}, s{sNT}, s{sT2}")
    a(f"v_and_b32 v{vN}, 31, v{vLane}", f"v_lshrrev_b32 v{vHh}, 5, v{vLane}")
    a(f"s_and_b32 s{sW4}, s{sWV}, 3", f"s_cmp_ge_u32 s{sWV}, 4", f"s_cbranch_scc0 {NAME}_M", f"s_cmp_ge_u32 s{sWV}, 8", f"s_cbranch_scc0 {NAME}_S")
    L, N_, Hh = vLane, vN, vHh
    def x_read_addr(dst):
        a(f"v_lshlrev_b32 v{vT}, 7, v{N_}", f"s_lshl_b32 s{sT0}, s{sW4}, 12", f"v_add_u32 v{vT}, s{sT0}, v{vT}", f"v_bfe_u32 v{vT+1}, v{N_}, 1, 3")
        for t in range(4):
            a(f"v_add_u32 v{vT+2}, {2*t}, v{Hh}", f"v_xor_b32 v{vT+2}, v{vT+2}, v{vT+1}", f"v_lshl_add_u32 v{dst+t}, v{vT+2}, 4, v{vT}")
    def w_read_addr(dst, nsl):
        a(f"v_bfe_u32 v{vT}, v{L}, 2, 2", f"v_lshl_add_u32 v{vT+1}, v{Hh}, 3, v{vT}", f"v_lshlrev_b32 v{vT+1}, 8, v{vT+1}",
          f"v_bfe_u32 v{vT+2}, v{L}, 4, 1", f"v_lshlrev_b32 v{vT+2}, 1, v{vT+2}", f"v_bfe_u32 v{vT+3}, v{L}, 1, 1", f"v_add_u32 v{vT+2}, v{vT+2}, v{vT+3}",
          f"v_lshl_add_u32 v{vT+1}, v{vT+2}, 4, v{vT+1}", f"v_and_b32 v{vT+3}, 1, v{L}", f"v_lshl_add_u32 v{vT+1}, v{vT+3}, 3, v{vT+1}", f"v_add_u32 v{vT+1}, 16384, v{vT+1}")
        for sl in range(nsl):
            a(f"s_add_u32 s{sT0}, s{sW4}, {sl}", f"s_and_b32 s{sT0}, s{sT0}, 3", f"v_xor_b32 v{vT+2}, s{sT0}, v{vT}", f"v_lshl_add_u32 v{dst+sl}, v{vT+2}, 6, v{vT+1}")
    def slot_delta(c):
        s0, s1 = c % NSLOT, (c + 1) % NSLOT
        return ((s1 // 2) - (s0 // 2)) * 65536
    def slot_imm(c): return ((c % NSLOT) & 1) * 32768
    vXe, vXo, vWv = 0, 1, 2
    LXA, LWA = 4, 8
    LXF, LWF = 12, 20
    LT = 28
    S1, S2, CS = 32, 34, 36
    a(f"v_lshrrev_b32 v{vT}, 3, v{L}", f"v_mul_u32_u24 v{vT}, 1280, v{vT}", f"v_lshrrev_b32 v{vT+1}, 4, v{L}",
      f"v_and_b32 v{vT+2}, 7, v{L}", f"v_xor_b32 v{vT+2}, v{vT+2}, v{vT+1}", f"v_lshl_add_u32 v{vXe}, v{vT+2}, 4, v{vT}", f"v_xor_b32 v{vXo}, 64, v{vXe}",
      f"v_mul_u32_u24 v{vT}, 3840, v{vT+1}", f"v_lshlrev_b32 v{vT+2}, 2, v{vT+1}", f"v_and_b32 v{vT+3}, 15, v{L}", f"v_xor_b32 v{vT+2}, v{vT+2}, v{vT+3}",
      f"v_lshl_add_u32 v{vWv}, v{vT+2}, 4, v{vT}")
    if "noprio" not in abl: a("s_setprio 3")
    a(f"s_mul_i32 s{sXso}, s{sW4}, 40960", f"s_lshl_b32 s{sLX}, s{sW4}, 12", f"s_mul_i32 s{sWso}, s{sW4}, {16*3840}", f"s_add_u32 s{sLW}, s{sLX}, 16384")
    a("s_waitcnt lgkmcnt(0)")
    a(f"s_mul_i32 s{sT0}, s{sMT}, 163840")
    srd(a, SRX, sX, sX+1, f"s{sT0}", 163840)
    a(f"s_lshl_b32 s{sT0}, s{sNT}, 8", f"s_sub_u32 s{sT1}, {640*3840}, s{sT0}")
    srd(a, SRW, sW, sW+1, f"s{sT0}", f"s{sT1}")
    vq = Q(a, "vmcnt", 63); lq = Q(a, "lgkmcnt", 15)
    sKC, sXc, sWc = 40, 41, 42
    if "norot" in abl: a(f"s_mov_b32 s{sKC}, 0")
    else:
        a(f"s_lshr_b32 s{sKC}, s{sMT}, 2", f"s_lshl_b32 s{sKC}, s{sKC}, 1", f"s_lshr_b32 s{sT0}, s{sNT}, 3", f"s_mul_i32 s{sT0}, s{sT0}, 5", f"s_add_u32 s{sKC}, s{sKC}, s{sT0}",
          f"s_cmp_ge_u32 s{sKC}, 10", f"s_cselect_b32 s{sT0}, 10, 0", f"s_sub_u32 s{sKC}, s{sKC}, s{sT0}")
    def next_chunk():
        a(f"s_lshl_b32 s{sXc}, s{sKC}, 7", f"s_add_u32 s{sXc}, s{sXc}, s{sXso}", f"s_mul_i32 s{sWc}, s{sKC}, {64*3840}", f"s_add_u32 s{sWc}, s{sWc}, s{sWso}",
          f"s_add_u32 s{sKC}, s{sKC}, 1", f"s_cmp_ge_u32 s{sKC}, 10", f"s_cselect_b32 s{sKC}, 0, s{sKC}")
    def dma_piece(c, j):
        slot = c % NSLOT
        if j < 4:
            a(f"s_add_u32 m0, s{sLX}, {slot*32768 + j*1024}", f"s_add_u32 s{sT0}, s{sXc}, {j*10240}",
              f"buffer_load_dwordx4 v{vXo if j&1 else vXe}, s[{SRX}:{SRX+3}], s{sT0} offen lds")
        else:
            j -= 4
            a(f"s_add_u32 m0, s{sLW}, {slot*32768 + j*1024}", f"s_add_u32 s{sT0}, s{sWc}, {j*4*3840}",
              f"buffer_load_dwordx4 v{vWv}, s[{SRW}:{SRW+3}], s{sT0} offen lds")
        vq.issue(("c", c))
    order = [0, 4, 1, 5, 2, 6, 3, 7]
    def issue(c):
        next_chunk()
        for j in order: dma_piece(c, j)
    issue(0); issue(1); issue(2)
    if "touch" in abl:
        a(f"s_lshr_b32 s{sT3}, s2, 3", f"s_lshl_b32 s{sT3}, s{sT3}, 2", f"s_add_u32 s{sT3}, s{sT3}, s{sW4}")
        a(f"s_mul_i32 s{sT2}, s{sT3}, 28", f"v_add_u32 v{vT}, s{sT2}, v{L}", f"v_mul_u32_u24 v{vT+1}, 9363, v{vT}", f"v_lshrrev_b32 v{vT+1}, 16, v{vT+1}",
          f"v_mul_u32_u24 v{vT+2}, 7, v{vT+1}", f"v_sub_u32 v{vT+2}, v{vT}, v{vT+2}", f"v_mul_u32_u24 v{vT+1}, 1280, v{vT+1}", f"v_lshl_add_u32 v{vT+1}, v{vT+2}, 7, v{vT+1}",
          f"s_lshr_b32 s{sT2}, s{sMT}, 2", f"s_mul_i32 s{sT2}, s{sT2}, {512*1280}", f"s_add_u32 s{sT2}, s{sT2}, 384")
        srd(a, 48, sX, sX+1, None, S*D*2)
        a("s_mov_b32 exec_lo, 0x0fffffff", "s_mov_b32 exec_hi, 0", f"buffer_load_dword v{vT+14}, v{vT+1}, s[48:51], s{sT2} offen", "s_mov_b64 exec, -1")
        vq.issue("touch")
        a(f"s_mul_i32 s{sT2}, s{sT3}, 56", f"v_add_u32 v{vT}, s{sT2}, v{L}", f"v_lshrrev_b32 v{vT+1}, 4, v{vT}", f"v_and_b32 v{vT+2}, 15, v{vT}",
          f"v_mul_u32_u24 v{vT+1}, 3840, v{vT+1}", f"v_lshl_add_u32 v{vT+1}, v{vT+2}, 7, v{vT+1}",
          f"s_lshr_b32 s{sT2}, s{sNT}, 3", f"s_lshl_b32 s{sT2}, s{sT2}, 11", f"s_add_u32 s{sT2}, s{sT2}, {192*3840}")
        srd(a, 52, sW, sW+1, None, 640*3840)
        a("s_mov_b32 exec_hi, 0x00ffffff", f"buffer_load_dword v{vT+15}, v{vT+1}, s[52:55], s{sT2} offen", "s_mov_b64 exec, -1")
        vq.issue("touch")
    if prefetch_code:
        a(f"s_lshr_b32 s{sT3}, s2, 3", f"s_cmp_ge_u32 s{sT3}, {prefetch_code}", f"s_cbranch_scc1 {NAME}_nocpf", f"s_cmp_lg_u32 s{sWV}, 11", f"s_cbranch_scc1 {NAME}_nocpf")
        emit_code_prefetch(a, "all_code_begin", "all_code_end", sT3, vLane, vT+12, 44)
        a.label(f"{NAME}_nocpf")
    st.mark(a)
    vq.wait(("c", 0)); a("s_barrier")
    st.mark(a)
    issue(3)
    for k in range(1, 10):
        vq.wait(("c", k)); a("s_barrier")
        nx = k + 3
        if nx < 10: issue(nx)
    st.mark(a)
    a("s_barrier")
    st.flush(a, sWV, vT)
    a("s_endpgm")
    st.n = 1
    a.label(f"{NAME}_S")
    lq = Q(a, "lgkmcnt", 15)
    x_read_addr(LXA)
    a(f"s_mov_b32 s{sMask}, 0xffff0000")
    SA = 32
    for r in range(SA, SA+4): a(f"v_mov_b32 v{r}, 0")
    def LrdX(c, t):
        b = LXF + 4*((4*c + t) & 1)
        a(f"ds_read_b128 v[{b}:{b+3}], v{LXA+t} offset:{slot_imm(c)}"); lq.issue(("x", c, t))
    st.mark(a)
    a("s_barrier")
    st.mark(a)
    LrdX(0, 0)
    for c in range(10):
        for t in range(4):
            cn, tn = (c, t + 1) if t < 3 else (c + 1, 0)
            if t == 3 and cn < 10:
                a("s_barrier")
                d = slot_delta(c)
                if d:
                    for r in range(LXA, LXA+4): a(f"v_add_u32 v{r}, {d & 0xffffffff}, v{r}")
            if cn < 10: LrdX(cn, tn)
            lq.wait(("x", c, t))
            xb = LXF + 4*((4*c + t) & 1)
            if "nostat" in abl: continue
            for r in range(4):
                tp = LT + 2*(r & 1)
                a(f"v_lshlrev_b32 v{tp}, 16, v{xb+r}", f"v_and_b32 v{tp+1}, s{sMask}, v{xb+r}",
                  f"v_add_f32 v{SA}, v{SA}, v{tp}", f"v_add_f32 v{SA+1}, v{SA+1}, v{tp+1}",
                  f"v_fma_f32 v{SA+2}, v{tp}, v{tp}, v{SA+2}", f"v_fma_f32 v{SA+3}, v{tp+1}, v{tp+1}, v{SA+3}")
    st.mark(a)
    S1, S2 = SA, SA + 2
    for r in (S1, S2): a(f"v_add_f32 v{r}, v{r}, v{r+1}")
    for r in (S1, S2): a(f"v_mov_b32 v{r+1}, v{r}")
    a("s_nop 1")
    for r in (S1, S2): a(f"v_permlane32_swap_b32 v{r}, v{r+1}")
    a("s_nop 1")
    for r in (S1, S2): a(f"v_add_f32 v{r}, v{r}, v{r+1}")
    a(f"v_mul_f32 v{S1}, {fhex(1.0/640)}, v{S1}", f"v_mul_f32 v{S2}, {fhex(1.0/640)}, v{S2}",
      f"v_fma_f32 v{S2}, -v{S1}, v{S1}, v{S2}", f"v_max_f32 v{S2}, 0, v{S2}", f"v_add_f32 v{S2}, {fhex(EPS)}, v{S2}", f"v_rsq_f32 v{S1+1}, v{S2}",
      f"s_lshl_b32 s{sT0}, s{sW4}, 8", f"v_lshl_add_u32 v{vT}, v{N_}, 3, s{sT0}", f"ds_write_b64 v{vT}, v[{S1}:{S1+1}] offset:{SCR_ST}")
    a("s_waitcnt lgkmcnt(0)", "s_barrier")
    st.flush(a, sWV, vT)
    a("s_endpgm")
    st.n = 1
    a.label(f"{NAME}_M")
    if "noprio" not in abl: a("s_setprio 2")
    ACC, WF, XF, vXA, vWA, vST = 0, 64, 80, 88, 92, 96
    vCSR = 132
    x_read_addr(vXA); w_read_addr(vWA, 4)
    SEL, CSA = 164, 160
    a(f"v_and_b32 v{vT}, 15, v{L}", f"v_bfe_u32 v{vT+1}, v{L}, 4, 1", f"v_cmp_eq_u32 vcc, v{vT}, v{vT+1}", f"v_mov_b32 v{vT+2}, 0x3f803f80", "s_nop 0",
      f"v_cndmask_b32 v{SEL}, 0, v{vT+2}, vcc")
    for r in range(1, 4): a(f"v_mov_b32 v{SEL+r}, v{SEL}")
    a(f"s_cmp_eq_u32 s{sSEC}, 2", f"s_cbranch_scc1 {NAME}_addr_v")
    a(f"s_cmp_eq_u32 s{sSEC}, 0")
    csel(a, f"s{sT2}", 81920, 163840); csel(a, f"s{sT3}", 1280, 2560); csel(a, f"s{sBlkOff}", Q_OFF, KV_OFF)
    a(f"s_lshl_b32 s{sT0}, s{sMT}, 2", f"s_add_u32 s{sT0}, s{sT0}, s{sW4}", f"s_mul_i32 s{sT0}, s{sT0}, s{sT3}", f"s_add_u32 s{sBlkOff}, s{sBlkOff}, s{sT0}",
      f"v_lshlrev_b32 v{vT+8}, 4, v{N_}")
    for sl in range(4):
        a(f"s_add_u32 s{sT0}, s{sW4}, {sl}", f"s_and_b32 s{sT0}, s{sT0}, 3", f"s_lshl_b32 s{sT0}, s{sT0}, 3",
          f"s_lshl_b32 s{sT1}, s{sNTS}, 5", f"s_add_u32 s{sT0}, s{sT0}, s{sT1}")
        for j in range(4):
            g, hd, dg = vT, vT+1, vT+2
            a(f"v_add_u32 v{g}, s{sT0}, v{Hh}")
            if j: a(f"v_add_u32 v{g}, {2*j}, v{g}")
            a(f"v_mul_u32_u24 v{hd}, 205, v{g}", f"v_lshrrev_b32 v{hd}, 10, v{hd}", f"v_mul_u32_u24 v{dg}, 5, v{hd}", f"v_sub_u32 v{dg}, v{g}, v{dg}",
              f"v_mul_lo_u32 v{hd}, v{hd}, s{sT2}", f"v_lshrrev_b32 v{vT+3}, 2, v{dg}", f"v_lshrrev_b32 v{vT+3}, v{vT+3}, v{vT+8}", f"v_add_u32 v{hd}, v{hd}, v{vT+3}",
              f"v_lshrrev_b32 v{vT+3}, 1, v{dg}", f"v_lshl_add_u32 v{hd}, v{vT+3}, 9, v{hd}", f"v_and_b32 v{vT+3}, 1, v{dg}", f"v_lshl_add_u32 v{vST+4*sl+j}, v{vT+3}, 3, v{hd}")
    def m_main(isv):
        lq = Q(a, "lgkmcnt", 15)
        def rdX(c, t):
            b = XF + 4*((4*c + t) & 1)
            a(f"ds_read_b128 v[{b}:{b+3}], v{vXA+t} offset:{slot_imm(c)}"); lq.issue(("x", c, t))
        def rdW(c, t, sl):
            a(f"ds_read_b64_tr_b16 v[{WF+4*sl}:{WF+4*sl+1}], v{vWA+sl} offset:{slot_imm(c) + t*4096}",
              f"ds_read_b64_tr_b16 v[{WF+4*sl+2}:{WF+4*sl+3}], v{vWA+sl} offset:{slot_imm(c) + t*4096 + 1024}")
            lq.issue(("w", c, t, sl)); lq.issue(("w", c, t, sl))
        st.mark(a)
        a("s_barrier")
        st.mark(a)
        rdX(0, 0)
        for sl in range(4): rdW(0, 0, sl)
        for c in range(10):
            for t in range(4):
                cn, tn = (c, t + 1) if t < 3 else (c + 1, 0)
                d = slot_delta(c) if (t == 3 and cn < 10) else 0
                if t == 3 and cn < 10:
                    a("s_barrier")
                    if d: a(f"v_add_u32 v{vXA}, {d & 0xffffffff}, v{vXA}")
                if cn < 10: rdX(cn, tn)
                xb = XF + 4*((4*c + t) & 1)
                xf = f"v[{xb}:{xb+3}]"
                for sl in range(4):
                    lq.wait(("w", c, t, sl), ("x", c, t))
                    wf = f"v[{WF+4*sl}:{WF+4*sl+3}]"
                    acc = f"v[{ACC+16*sl}:{ACC+16*sl+15}]"
                    cin = "0" if (c == 0 and t == 0) else acc
                    if "nomfma" in abl: pass
                    elif isv: a(f"v_mfma_f32_32x32x16_bf16 {acc}, {xf}, {wf}, {cin}")
                    else: a(f"v_mfma_f32_32x32x16_bf16 {acc}, {wf}, {xf}, {cin}")
                    if sl == 0:
                        a(f"v_mfma_f32_16x16x32_bf16 v[{CSA}:{CSA+3}], v[{SEL}:{SEL+3}], {wf}, {'0' if (c == 0 and t == 0) else f'v[{CSA}:{CSA+3}]'}")
                    if d:
                        a(f"v_add_u32 v{vWA+sl}, {d & 0xffffffff}, v{vWA+sl}")
                        if sl < 3: a(f"v_add_u32 v{vXA+1+sl}, {d & 0xffffffff}, v{vXA+1+sl}")
                    if cn < 10: rdW(cn, tn, sl)
        st.mark(a)
        a(f"s_lshl_b32 s{sT0}, s{sW4}, 7", f"v_lshl_add_u32 v{vT}, v{L}, 2, s{sT0}", "s_nop 7", "s_mov_b64 exec, 0xffff",
          f"ds_write_b32 v{vT}, v{CSA} offset:{SCR_CS}", f"ds_write_b32 v{vT}, v{CSA+1} offset:{SCR_CS+64}", "s_mov_b64 exec, -1", "s_waitcnt lgkmcnt(0)")
        a("s_barrier")
    m_main(False)
    mean = vT + 10
    a(f"s_lshl_b32 s{sT0}, s{sW4}, 8", f"v_lshl_add_u32 v{vT}, v{N_}, 3, s{sT0}", f"ds_read_b64 v[{mean}:{mean+1}], v{vT} offset:{SCR_ST}")
    a(f"v_lshlrev_b32 v{vT}, 4, v{Hh}")
    for sl in range(4):
        a(f"s_add_u32 s{sT0}, s{sW4}, {sl}", f"s_and_b32 s{sT0}, s{sT0}, 3", f"s_lshl_b32 s{sT0}, s{sT0}, 7", f"v_add_u32 v{vT+1}, s{sT0}, v{vT}")
        if sl < 2:
            for j in range(4): a(f"ds_read_b128 v[{vCSR+16*sl+4*j}:{vCSR+16*sl+4*j+3}], v{vT+1} offset:{SCR_CS + j*32}")
        else:
            a(f"v_mov_b32 v{vT+sl}, v{vT+1}")
    rs = vT + 12
    a(f"s_cmp_eq_u32 s{sSEC}, 0", f"s_cselect_b32 s{sT0}, {fhex(QSCALE)}, 1.0", "s_waitcnt lgkmcnt(8)", f"v_mul_f32 v{rs}, s{sT0}, v{mean+1}")
    for sl in range(4):
        cs0 = vCSR + 16*(sl & 1)
        for j in range(4):
            if sl < 2: a(f"s_waitcnt lgkmcnt({7 - 4*sl - j})")
            elif j == 0: a("s_waitcnt lgkmcnt(0)" if sl == 3 else "s_waitcnt lgkmcnt(4)")
            r = ACC + 16*sl + 4*j
            for h2 in range(2):
                a(f"v_pk_fma_f32 v[{r+2*h2}:{r+2*h2+1}], v[{mean}:{mean+1}], v[{cs0+4*j+2*h2}:{cs0+4*j+2*h2+1}], v[{r+2*h2}:{r+2*h2+1}] op_sel_hi:[0,1,1] neg_lo:[1,0,0] neg_hi:[1,0,0]")
            for h2 in range(2):
                a(f"v_pk_mul_f32 v[{r+2*h2}:{r+2*h2+1}], v[{rs}:{rs+1}], v[{r+2*h2}:{r+2*h2+1}] op_sel_hi:[0,1]")
            p = vT + 4 + 2*(j & 1)
            a(f"v_cvt_pk_bf16_f32 v{p}, v{r}, v{r+1}", f"v_cvt_pk_bf16_f32 v{p+1}, v{r+2}, v{r+3}",
              f"buffer_store_dwordx2 v[{p}:{p+1}], v{vST+4*sl+j}, s[{SRO}:{SRO+3}], s{sBlkOff} offen" + (" sc1" if "sc1" in abl else ""))
        if sl < 2:
            for j in range(4): a(f"ds_read_b128 v[{cs0+4*j}:{cs0+4*j+3}], v{vT+2+sl} offset:{SCR_CS + j*32}")
    st.flush(a, sWV, vT)
    a("s_endpgm")
    st.n = 1
    a.label(f"{NAME}_addr_v")
    a(f"s_lshl_b32 s{sT0}, s{sMT}, 2", f"s_add_u32 s{sT0}, s{sT0}, s{sW4}", f"s_mul_i32 s{sT0}, s{sT0}, 2560", f"s_add_u32 s{sBlkOff}, s{sT0}, {KV_OFF + 1280}",
      f"s_mov_b32 s{sT2}, 163840")
    for sl in range(4):
        a(f"s_add_u32 s{sT0}, s{sW4}, {sl}", f"s_and_b32 s{sT0}, s{sT0}, 3", f"s_lshl_b32 s{sT0}, s{sT0}, 5",
          f"s_lshl_b32 s{sT1}, s{sNTS}, 7", f"s_add_u32 s{sT0}, s{sT0}, s{sT1}")
        c, hd, d = vT, vT+1, vT+2
        a(f"v_add_u32 v{c}, s{sT0}, v{N_}", f"v_mul_u32_u24 v{hd}, 3277, v{c}", f"v_lshrrev_b32 v{hd}, 16, v{hd}",
          f"v_mul_u32_u24 v{d}, 20, v{hd}", f"v_sub_u32 v{d}, v{c}, v{d}", f"v_mul_lo_u32 v{hd}, v{hd}, s{sT2}",
          f"v_lshl_add_u32 v{hd}, v{d}, 4, v{hd}", f"v_mul_u32_u24 v{d}, 320, v{Hh}", f"v_add_u32 v{vST+sl}, v{hd}, v{d}")
    m_main(True)
    RS, MR = vCSR, vCSR + 16
    a(f"s_lshl_b32 s{sT0}, s{sW4}, 8", f"v_lshl_add_u32 v{vT+1}, v{Hh}, 5, s{sT0}")
    for j in range(4):
        a(f"ds_read_b128 v[{RS+8*j}:{RS+8*j+3}], v{vT+1} offset:{SCR_ST + j*64}", f"ds_read_b128 v[{RS+8*j+4}:{RS+8*j+7}], v{vT+1} offset:{SCR_ST + j*64 + 16}")
    for sl in range(4):
        a(f"s_add_u32 s{sT0}, s{sW4}, {sl}", f"s_and_b32 s{sT0}, s{sT0}, 3", f"s_lshl_b32 s{sT0}, s{sT0}, 7", f"v_lshl_add_u32 v{vT+2}, v{N_}, 2, s{sT0}",
          f"ds_read_b32 v{vT+8+sl}, v{vT+2} offset:{SCR_CS}")
    a("s_waitcnt lgkmcnt(4)")
    for q in range(16): a(f"v_mul_f32 v{RS+2*q}, v{RS+2*q}, v{RS+2*q+1}")
    a("s_waitcnt lgkmcnt(0)")
    for sl in range(4):
        cs = vT + 8 + sl
        for mf in range(2):
            p = vT + 4*mf
            for r8 in range(8):
                rr = 8*mf + r8
                a(f"v_mul_f32 v{ACC+16*sl+rr}, v{RS+2*rr+1}, v{ACC+16*sl+rr}")
            for r8 in range(8):
                rr = 8*mf + r8
                a(f"v_fma_f32 v{ACC+16*sl+rr}, -v{RS+2*rr}, v{cs}, v{ACC+16*sl+rr}")
            for q in range(4):
                r = ACC + 16*sl + 8*mf + 2*q
                a(f"v_cvt_pk_bf16_f32 v{p+q}, v{r}, v{r+1}")
            a(f"s_add_u32 s{sT0}, s{sBlkOff}, {mf*640}", f"buffer_store_dwordx4 v[{p}:{p+3}], v{vST+sl}, s[{SRO}:{SRO+3}], s{sT0} offen" + (" sc1" if "sc1" in abl else ""))
    st.flush(a, sWV, vT)
    a.label(f"{NAME}_end")
    a("s_endpgm")
    i = a.l.index(f"{NAME}_M:")
    b = Asm(); b("s_waitcnt lgkmcnt(0)"); srd(b, SRO, sWS, sWS+1, None, O_OFF)
    a.l[i+1:i+1] = b.l
    return a, kernel_desc(NAME, NV, NV), (NAME, 256, 768, 163840)
if __name__ == "__main__":
    a, d, l = gen(prefetch_code=8)
    for p in check_hazards(a.text(), NAME): print(p)
    print(len(a.l), "lines")
```

```python
from gen_common import *
NAME = "k2_attn_kernel"
def gen(stamp=None, abl=()):
    a = Asm(); st = Stamps(stamp)
    kernel_header(a, NAME); st.mark(a)
    sWS = 4
    SRKV, SRQ, SRO = 8, 12, 16
    sHead, sQB, sWV, sPa, sPb, sIt, sPass = 20, 21, 22, 23, 24, 25, 26
    sQG, sKH = 27, 35
    sMaskV = 28
    sT0, sT1, sT2, sT3 = 30, 31, 32, 33
    sBad = 38
    SRA, SRB = 40, 44
    sRs, sRd, sRty = 48, 49, 50
    vQ0 = [4, 10]; vQ1 = [8, 14]
    vS = [16, 32]; vP = [48, 56]; vO = [64, 80]
    vK0, vK1, vV0, vV1 = 96, 100, 104, 108
    vCi = [112]
    vAK0, vAK1, vAV = 144, 145, 146
    vL16, vLane, vN, vHh = 147, 148, 149, 150
    vT = 152
    vM = 168
    vR = 172
    vRp = 192
    NV = 200
    a(f"s_cmp_ge_u32 s2, 256", f"s_cbranch_scc1 {NAME}_end")
    a(f"s_load_dwordx2 s[{sWS}:{sWS+1}], s[0:1], 64")
    a(f"s_and_b32 s{sT0}, s2, 7", f"s_lshr_b32 s{sT1}, s2, 3", f"s_lshl_b32 s{sHead}, s{sT0}, 2", f"s_lshr_b32 s{sT2}, s{sT1}, 3",
      f"s_add_u32 s{sHead}, s{sHead}, s{sT2}", f"s_and_b32 s{sQB}, s{sT1}, 7")
    a(f"v_lshrrev_b32 v{vT}, 6, v0", f"v_and_b32 v{vLane}, 63, v0", f"v_lshlrev_b32 v{vL16}, 4, v{vLane}", f"v_readfirstlane_b32 s{sWV}, v{vT}",
      f"v_and_b32 v{vN}, 31, v{vLane}", f"v_lshrrev_b32 v{vHh}, 5, v{vLane}")
    for sl in range(2):
        for r in range(2): a(f"v_mov_b32 v{vQ1[sl]+r}, 0")
    a(f"s_and_b32 s{sQG}, s{sWV}, 3", f"s_lshr_b32 s{sKH}, s{sWV}, 2", f"s_mov_b32 s{sPass}, 0")
    a("s_waitcnt lgkmcnt(0)")
    a(f"s_mul_i32 s{sT0}, s{sHead}, 163840")
    srd(a, SRKV, sWS, sWS+1, f"s{sT0}", 163840)
    a(f"s_mul_i32 s{sT0}, s{sHead}, 81920", f"s_lshl_b32 s{sT1}, s{sQB}, 3", f"s_lshl_b32 s{sT2}, s{sQG}, 1", f"s_add_u32 s{sT1}, s{sT1}, s{sT2}",
      f"s_mul_i32 s{sT1}, s{sT1}, 1280", f"s_add_u32 s{sT0}, s{sT0}, s{sT1}", f"s_add_u32 s{sT0}, s{sT0}, {Q_OFF}")
    srd(a, SRQ, sWS, sWS+1, f"s{sT0}", 2560)
    a(f"s_mul_i32 s{sT0}, s{sKH}, 1280", f"s_sub_u32 s{sT1}, 1280, s{sT0}", f"v_lshlrev_b32 v{vT}, 3, v{vN}")
    for sl, so in ((0, sT0), (1, sT1)):
        a(f"buffer_load_dwordx4 v[{vQ0[sl]}:{vQ0[sl]+3}], v{vL16}, s[{SRQ}:{SRQ+3}], s{so} offen")
    a("s_mov_b32 exec_hi, 0")
    for sl, so in ((0, sT0), (1, sT1)):
        a(f"buffer_load_dwordx2 v[{vQ1[sl]}:{vQ1[sl]+1}], v{vT}, s[{SRQ}:{SRQ+3}], s{so} offen offset:1024")
    a("s_mov_b32 exec_hi, -1")
    vq = Q(a, "vmcnt", 63)
    a(f"s_mul_i32 s{sPa}, s{sKH}, 81920", f"s_lshl_b32 s{sT0}, s{sQG}, 10", f"s_add_u32 s{sPa}, s{sPa}, s{sT0}")
    def kv_piece(j):
        a(f"s_add_u32 m0, s{sPa}, {j*4096}", f"s_add_u32 s{sPb}, s{sPa}, {j*4096}", f"buffer_load_dwordx4 v{vL16}, s[{SRKV}:{SRKV+3}], s{sPb} offen lds")
        vq.issue(("kv", j))
    for j in range(4): kv_piece(j)
    srd(a, SRO, sWS, sWS+1, O_OFF, 32*81920)
    a(f"s_mov_b32 s{sMaskV}, 0x000fffff", f"s_mov_b32 s{sMaskV+1}, 0x000fffff")
    a(f"v_cmp_eq_u32 vcc, 20, v{vN}", f"v_mov_b32 v{vT}, 0x3f803f80", "s_nop 0", f"v_cndmask_b32 v{vT+1}, 0, v{vT}, vcc")
    for r in range(4): a(f"v_mov_b32 v{vV0+r}, v{vT+1}", f"v_mov_b32 v{vV1+r}, v{vT+1}")
    vSA = 197
    sOo = 51
    a(f"s_lshl_b32 s{sT0}, s{sQB}, 2", f"s_add_u32 s{sT0}, s{sT0}, s{sQG}", f"s_mul_i32 s{sOo}, s{sT0}, 81920",
      f"s_lshl_b32 s{sT1}, s{sKH}, 9", f"s_add_u32 s{sOo}, s{sOo}, s{sT1}", f"s_mul_i32 s{sT1}, s{sHead}, 5", f"v_lshlrev_b32 v{vT+8}, 4, v{vN}")
    for j in range(3):
        g = vT + 4
        a(f"v_add_u32 v{g}, s{sT1}, v{vHh}")
        if j: a(f"v_add_u32 v{g}, {2*j}, v{g}")
        a(f"v_lshrrev_b32 v{g+1}, 3, v{g}", f"v_lshlrev_b32 v{g+1}, 2, v{g+1}", f"v_bfe_u32 v{g+2}, v{g}, 2, 1", f"v_lshl_add_u32 v{g+1}, v{g+2}, 1, v{g+1}",
          f"v_and_b32 v{g+2}, 1, v{g}", f"v_add_u32 v{g+1}, v{g+1}, v{g+2}", f"v_lshl_add_u32 v{g+1}, v{g+1}, 10, v{vT+8}",
          f"v_bfe_u32 v{g+2}, v{g}, 1, 1", f"v_lshl_add_u32 v{vSA+j}, v{g+2}, 3, v{g+1}")
    def reset_addr():
        a(f"s_mul_i32 s{sT0}, s{sKH}, 81920", f"v_add_u32 v{vAK0}, s{sT0}, v{vL16}", f"v_lshlrev_b32 v{vAK1}, 3, v{vN}", f"v_add_u32 v{vAK1}, s{sT0}, v{vAK1}",
          f"v_add_u32 v{vAK1}, 1024, v{vAK1}", f"v_mul_u32_u24 v{vAV}, 320, v{vHh}", f"v_lshl_add_u32 v{vAV}, v{vN}, 4, v{vAV}", f"v_add_u32 v{vAV}, s{sT0}, v{vAV}",
          f"v_add_u32 v{vAV}, 1280, v{vAV}")
    def rdK0(off): a(f"ds_read_b128 v[{vK0}:{vK0+3}], v{vAK0} offset:{off}")
    def rdK1(off): a(f"ds_read_b64 v[{vK1}:{vK1+1}], v{vAK1} offset:{off}")
    def rdV(off):
        a(f"s_mov_b64 exec, s[{sMaskV}:{sMaskV+1}]", f"ds_read_b128 v[{vV0}:{vV0+3}], v{vAV} offset:{off}", f"ds_read_b128 v[{vV1}:{vV1+3}], v{vAV} offset:{off+640}", "s_mov_b64 exec, -1")
    def QK0(sl, ci): a(f"v_mfma_f32_32x32x16_bf16 v[{vS[sl]}:{vS[sl]+15}], v[{vK0}:{vK0+3}], v[{vQ0[sl]}:{vQ0[sl]+3}], {ci(sl)}")
    def QK1(sl): a(f"v_mfma_f32_32x32x8_bf16 v[{vS[sl]}:{vS[sl]+15}], v[{vK1}:{vK1+1}], v[{vQ1[sl]}:{vQ1[sl]+1}], v[{vS[sl]}:{vS[sl]+15}]")
    def PV(sl, half):
        vreg = vV0 if half == 0 else vV1
        a(f"v_mfma_f32_32x32x16_bf16 v[{vO[sl]}:{vO[sl]+15}], v[{vreg}:{vreg+3}], v[{vP[sl]+4*half}:{vP[sl]+4*half+3}], v[{vO[sl]}:{vO[sl]+15}]")
    def grp(sl, g):
        b = vS[sl] + 4*g
        for i in range(4): a(f"v_exp_f32 v{b+i}, v{b+i}")
        a(f"v_cvt_pk_bf16_f32 v{vP[sl]+2*g}, v{b}, v{b+1}", f"v_cvt_pk_bf16_f32 v{vP[sl]+2*g+1}, v{b+2}, v{b+3}")
    def repack_loads():
        u = f"{NAME}_rp"
        a(f"s_lshl_b32 s{sT0}, s{sWV}, 8", f"s_add_u32 s{sT0}, s{sT0}, s2", f"s_mov_b32 s{sRty}, 0",
          f"s_cmp_ge_u32 s{sT0}, 1184", f"s_cbranch_scc1 {u}_done")
        a(f"s_cmp_ge_u32 s{sT0}, 640", f"s_cbranch_scc1 {u}_b")
        a(f"s_load_dwordx2 s[{SRA}:{SRA+1}], s[0:1], 32", f"s_mul_i32 s{sT1}, s{sT0}, 1639", f"s_lshr_b32 s{sT1}, s{sT1}, 16",
          f"s_mul_i32 s{sT2}, s{sT1}, 40", f"s_sub_u32 s{sT2}, s{sT0}, s{sT2}",
          f"s_mul_i32 s{sRs}, s{sT2}, {16*3072}", f"s_mul_i32 s{sT3}, s{sT1}, 192", f"s_add_u32 s{sRs}, s{sRs}, s{sT3}",
          f"s_mul_i32 s{sRd}, s{sT1}, 122880", f"s_mul_i32 s{sT3}, s{sT2}, 3072", f"s_add_u32 s{sRd}, s{sRd}, s{sT3}", f"s_add_u32 s{sRd}, s{sRd}, {W1_OFF}")
        for r in range(3):
            a(f"v_add_u32 v{vT}, {64*r}, v{vLane}", f"v_mul_u32_u24 v{vT+1}, 5462, v{vT}", f"v_lshrrev_b32 v{vT+1}, 16, v{vT+1}",
              f"v_mul_u32_u24 v{vT+2}, 12, v{vT+1}", f"v_sub_u32 v{vT+2}, v{vT}, v{vT+2}", f"v_mul_u32_u24 v{vT+1}, 3072, v{vT+1}", f"v_lshl_add_u32 v{vRp+r}, v{vT+2}, 4, v{vT+1}")
        a("s_waitcnt lgkmcnt(0)", f"s_and_b32 s{SRA+1}, s{SRA+1}, 0xffff", f"s_mov_b32 s{SRA+2}, {640*3072}", f"s_mov_b32 s{SRA+3}, 0x20000")
        for r in range(3): a(f"buffer_load_dwordx4 v[{vR+4*r}:{vR+4*r+3}], v{vRp+r}, s[{SRA}:{SRA+3}], s{sRs} offen")
        a(f"s_mov_b32 s{sRty}, 3", f"s_branch {u}_done")
        a.label(f"{u}_b")
        a(f"s_cmp_ge_u32 s{sT0}, 1024", f"s_cbranch_scc1 {u}_c")
        a(f"s_load_dwordx2 s[{SRA}:{SRA+1}], s[0:1], 40", f"s_sub_u32 s{sT0}, s{sT0}, 640", f"s_mul_i32 s{sT1}, s{sT0}, 1366", f"s_lshr_b32 s{sT1}, s{sT1}, 16",
          f"s_mul_i32 s{sT2}, s{sT1}, 48", f"s_sub_u32 s{sT2}, s{sT0}, s{sT2}", f"s_mul_i32 s{sRd}, s{sT1}, 245760", f"s_add_u32 s{sRd}, s{sRd}, {W2_OFF}",
          f"s_mov_b32 s{SRA+2}, {1536*1280}", f"s_branch {u}_bc")
        a.label(f"{u}_c")
        a(f"s_load_dwordx2 s[{SRA}:{SRA+1}], s[0:1], 16", f"s_sub_u32 s{sT0}, s{sT0}, 1024", f"s_mul_i32 s{sT1}, s{sT0}, 3277", f"s_lshr_b32 s{sT1}, s{sT1}, 16",
          f"s_mul_i32 s{sT2}, s{sT1}, 20", f"s_sub_u32 s{sT2}, s{sT0}, s{sT2}", f"s_mul_i32 s{sRd}, s{sT1}, 102400", f"s_add_u32 s{sRd}, s{sRd}, {WO_OFF}",
          f"s_mov_b32 s{SRA+2}, {640*1280}")
        a.label(f"{u}_bc")
        a(f"s_mul_i32 s{sRs}, s{sT2}, {32*1280}", f"s_mul_i32 s{sT3}, s{sT1}, 160", f"s_add_u32 s{sRs}, s{sRs}, s{sT3}",
          f"s_mul_i32 s{sT3}, s{sT2}, 5120", f"s_add_u32 s{sRd}, s{sRd}, s{sT3}")
        for r in range(5):
            a(f"v_add_u32 v{vT}, {64*r}, v{vLane}", f"v_mul_u32_u24 v{vT+1}, 6554, v{vT}", f"v_lshrrev_b32 v{vT+1}, 16, v{vT+1}",
              f"v_mul_u32_u24 v{vT+2}, 10, v{vT+1}", f"v_sub_u32 v{vT+2}, v{vT}, v{vT+2}", f"v_mul_u32_u24 v{vT+1}, 1280, v{vT+1}", f"v_lshl_add_u32 v{vRp+r}, v{vT+2}, 4, v{vT+1}")
        a("s_waitcnt lgkmcnt(0)", f"s_and_b32 s{SRA+1}, s{SRA+1}, 0xffff", f"s_mov_b32 s{SRA+3}, 0x20000")
        for r in range(5): a(f"buffer_load_dwordx4 v[{vR+4*r}:{vR+4*r+3}], v{vRp+r}, s[{SRA}:{SRA+3}], s{sRs} offen")
        a(f"s_mov_b32 s{sRty}, 5")
        a.label(f"{u}_done")
    def repack_stores():
        u = f"{NAME}_rs"
        a(f"s_cmp_eq_u32 s{sRty}, 0", f"s_cbranch_scc1 {u}_done")
        srd(a, SRB, sWS, sWS+1, None, WS_END)
        a("s_waitcnt vmcnt(0)")
        for r in range(3): a(f"buffer_store_dwordx4 v[{vR+4*r}:{vR+4*r+3}], v{vL16}, s[{SRB}:{SRB+3}], s{sRd} offen offset:{r*1024} sc1")
        a(f"s_cmp_eq_u32 s{sRty}, 3", f"s_cbranch_scc1 {u}_done")
        a(f"buffer_store_dwordx4 v[{vR+12}:{vR+15}], v{vL16}, s[{SRB}:{SRB+3}], s{sRd} offen offset:3072 sc1",
          f"s_add_u32 s{sRd}, s{sRd}, 4096", f"buffer_store_dwordx4 v[{vR+16}:{vR+19}], v{vL16}, s[{SRB}:{SRB+3}], s{sRd} offen sc1")
        a.label(f"{u}_done")
    lab = f"{NAME}_f"
    ci = lambda sl: "0"
    reset_addr()
    for sl in range(2):
        for r in range(16): a(f"v_mov_b32 v{vO[sl]+r}, 0")
    for r in range(8): a(f"v_mov_b32 v{vP[1]+r}, 0")
    st.mark(a); vq.wait(("kv", 2)); a("s_barrier"); st.mark(a)
    rdK0(0); rdK1(0); rdV(0)
    a("s_waitcnt lgkmcnt(0)")
    QK0(0, ci); QK1(0)
    a("s_nop 7", "s_nop 3")
    def block(u, pre=None):
        QK0(1, ci); rdK0((u+1)*2560); grp(0, 0)
        PV(1, 0); a("s_waitcnt lgkmcnt(0)"); grp(0, 1)
        QK1(1); rdK1((u+1)*2560); grp(0, 2)
        PV(1, 1); rdV(u*2560); grp(0, 3)
        QK0(0, ci); a("s_waitcnt lgkmcnt(1)"); grp(1, 0)
        PV(0, 0)
        if "noprio2" not in abl: a("s_setprio 0")
        if pre: pre()
        grp(1, 1)
        QK1(0); a("s_waitcnt lgkmcnt(0)"); grp(1, 2)
        PV(0, 1)
        if "noprio2" not in abl: a("s_setprio 1")
        grp(1, 3)
    need = {2: 3, 4: 6}
    for u in range(8):
        if u in need: vq.wait(("kv", need[u])); a("s_barrier")
        block(u, pre=lambda u=u: (kv_piece(4 + 2*u), kv_piece(5 + 2*u)))
    for r in (vAK0, vAK1, vAV): a(f"v_add_u32 v{r}, {8*2560}, v{r}")
    a(f"s_mov_b32 s{sIt}, 1")
    a.label(f"{lab}_loop")
    a(f"s_cmp_lg_u32 s{sIt}, 1", f"s_cbranch_scc1 {lab}_nw1", "s_waitcnt vmcnt(8)", "s_barrier")
    if "norepack" not in abl: repack_loads()
    a(f"s_branch {lab}_go")
    a.label(f"{lab}_nw1")
    a(f"s_cmp_lg_u32 s{sIt}, 2", f"s_cbranch_scc1 {lab}_go", "s_waitcnt vmcnt(0)", "s_barrier")
    if "norepack" not in abl: repack_stores()
    a.label(f"{lab}_go")
    for u in range(8): block(u)
    for r in (vAK0, vAK1, vAV): a(f"v_add_u32 v{r}, {8*2560}, v{r}")
    a(f"s_add_u32 s{sIt}, s{sIt}, 1", f"s_cmp_lt_u32 s{sIt}, 4", f"s_cbranch_scc1 {lab}_loop")
    a("s_nop 1"); PV(1, 0); PV(1, 1)
    st.mark(a)
    a("s_barrier")
    a(f"s_mul_i32 s{sT0}, s{sWV}, 3072", f"v_add_u32 v{vT}, s{sT0}, v{vL16}", f"s_xor_b32 s{sT1}, s{sWV}, 4", f"s_mul_i32 s{sT1}, s{sT1}, 3072", f"v_add_u32 v{vT+1}, s{sT1}, v{vL16}",
      "s_nop 7", "s_nop 3")
    for q in range(3): a(f"ds_write_b128 v{vT}, v[{vO[1]+4*q}:{vO[1]+4*q+3}] offset:{q*1024}")
    a("s_waitcnt lgkmcnt(0)", "s_barrier")
    for q in range(3): a(f"ds_read_b128 v[{vO[1]+4*q}:{vO[1]+4*q+3}], v{vT+1} offset:{q*1024}")
    O = vO[0]; P = vP[0]
    for q in range(3):
        a(f"s_waitcnt lgkmcnt({2-q})")
        for r in range(4*q, 4*q+4): a(f"v_add_f32 v{O+r}, v{O+r}, v{vO[1]+r}")
    a.label(f"{NAME}_norm")
    a(f"v_mov_b32 v{vT}, v{O+8}", f"v_mov_b32 v{vT+1}, v{O+8}", "s_nop 1", f"v_permlane32_swap_b32 v{vT}, v{vT+1}", "s_nop 1")
    l = vT + 1
    a(f"v_rcp_f32 v{vT+2}, v{l}", f"v_mov_b32 v{vT+3}, 0")
    for r in range(12): a(f"v_mul_f32 v{O+r}, v{vT+2}, v{O+r}")
    a(f"s_cmp_lg_u32 s{sPass}, 0", f"s_cbranch_scc1 {NAME}_store")
    for r in range(12): a(f"v_fma_f32 v{vT+3}, v{O+r}, 0, v{vT+3}")
    a(f"v_fma_f32 v{vT+3}, v{l}, 0, v{vT+3}", f"v_cmp_gt_f32 vcc, {fhex(2.0**-40)}, v{l}", f"v_cmp_u_f32 s[{sBad}:{sBad+1}], v{vT+3}, v{vT+3}", "s_nop 1",
      f"s_or_b64 s[{sBad}:{sBad+1}], s[{sBad}:{sBad+1}], vcc")
    if "forcefb" in abl: a(f"s_mov_b64 s[{sBad}:{sBad+1}], 1")
    a(f"s_cmp_eq_u64 s[{sBad}:{sBad+1}], 0", f"s_cbranch_scc1 {NAME}_store")
    a(f"s_mov_b32 s{sPass}, 1", f"v_mov_b32 v{vM}, 0xff800000", f"v_lshlrev_b32 v{vAK1}, 3, v{vN}", f"v_add_u32 v{vAK1}, 1024, v{vAK1}",
      f"v_mul_u32_u24 v{vAV}, 320, v{vHh}", f"v_lshl_add_u32 v{vAV}, v{vN}, 4, v{vAV}", f"v_add_u32 v{vAV}, 1280, v{vAV}", f"s_mov_b32 s{sIt}, 0")
    def gK():
        a(f"buffer_load_dwordx4 v[{vK0}:{vK0+3}], v{vL16}, s[{SRKV}:{SRKV+3}], s{sIt} offen", f"buffer_load_dwordx2 v[{vK1}:{vK1+1}], v{vAK1}, s[{SRKV}:{SRKV+3}], s{sIt} offen")
    a.label(f"{NAME}_maxloop")
    gK()
    a("s_waitcnt vmcnt(0)")
    QK0(0, ci); QK1(0)
    a("s_nop 15")
    for r in range(0, 16, 2): a(f"v_max3_f32 v{vM}, v{vM}, v{vS[0]+r}, v{vS[0]+r+1}")
    a(f"s_add_u32 s{sIt}, s{sIt}, 2560", f"s_cmp_lt_u32 s{sIt}, 163840", f"s_cbranch_scc1 {NAME}_maxloop")
    a(f"v_mov_b32 v{vM+1}, v{vM}", "s_nop 1", f"v_permlane32_swap_b32 v{vM}, v{vM+1}", "s_nop 1", f"v_max_f32 v{vM}, v{vM}, v{vM+1}")
    for r in range(16): a(f"v_sub_f32 v{vCi[0]+r}, 0, v{vM}", f"v_mov_b32 v{O+r}, 0")
    a(f"s_mov_b32 s{sIt}, 0")
    a.label(f"{NAME}_exploop")
    gK()
    a(f"s_mov_b64 exec, s[{sMaskV}:{sMaskV+1}]",
      f"buffer_load_dwordx4 v[{vV0}:{vV0+3}], v{vAV}, s[{SRKV}:{SRKV+3}], s{sIt} offen", f"buffer_load_dwordx4 v[{vV1}:{vV1+3}], v{vAV}, s[{SRKV}:{SRKV+3}], s{sIt} offen offset:640",
      "s_mov_b64 exec, -1", "s_waitcnt vmcnt(0)")
    QK0(0, lambda sl: f"v[{vCi[0]}:{vCi[0]+15}]"); QK1(0)
    a("s_nop 15")
    for g in range(4): grp(0, g)
    a("s_nop 1"); PV(0, 0); PV(0, 1)
    a(f"s_add_u32 s{sIt}, s{sIt}, 2560", f"s_cmp_lt_u32 s{sIt}, 163840", f"s_cbranch_scc1 {NAME}_exploop")
    a("s_nop 15", f"s_branch {NAME}_norm")
    a.label(f"{NAME}_store")
    for j in range(3):
        a(f"v_cvt_pk_bf16_f32 v{P+2*j}, v{O+4*j}, v{O+4*j+1}", f"v_cvt_pk_bf16_f32 v{P+2*j+1}, v{O+4*j+2}, v{O+4*j+3}")
        if j == 2: a("s_mov_b32 exec_hi, 0")
        a(f"buffer_store_dwordx2 v[{P+2*j}:{P+2*j+1}], v{vSA+j}, s[{SRO}:{SRO+3}], s{sOo} offen")
    a.label(f"{NAME}_fin")
    st.flush(a, sWV, vT)
    a.label(f"{NAME}_end")
    a("s_endpgm")
    return a, kernel_desc(NAME, NV, NV), (NAME, 256, 512, 163840)
if __name__ == "__main__":
    a, d, l = gen()
    for p in check_hazards(a.text(), NAME): print(p)
    print(len(a.l), "lines")
```

```python
from gen_common import *
NAME = "k4_ffn1_kernel"
LOG2E = math.log2(math.e)
NSLOT, SLOT = 5, 28672
def gen(stamp=None, abl=()):
    a = Asm(); st = Stamps(stamp)
    kernel_header(a, NAME); st.mark(a)
    sWS = 6
    SRW, SRX, SRO, SRS = 8, 12, 16, 36
    sMT, sNT, sWV, sW4 = 20, 21, 22, 33
    sT0, sT1, sT2, sT3 = 23, 24, 25, 26
    sWso, sXso, sLW, sLX, sOo = 27, 28, 29, 30, 31
    sCB = 40
    vLane, vN, vHh = 112, 113, 114
    vT = 116
    NV = 136
    CSX = NSLOT * SLOT
    a(f"s_cmp_ge_u32 s2, 256", f"s_cbranch_scc1 {NAME}_end")
    a(f"s_load_dwordx2 s[{sWS}:{sWS+1}], s[0:1], 64")
    a(f"s_and_b32 s{sT0}, s2, 7", f"s_lshr_b32 s{sT1}, s2, 3",
      f"s_lshr_b32 s{sMT}, s{sT0}, 1", f"s_lshl_b32 s{sMT}, s{sMT}, 2", f"s_and_b32 s{sT2}, s{sT1}, 3", f"s_add_u32 s{sMT}, s{sMT}, s{sT2}",
      f"s_and_b32 s{sNT}, s{sT0}, 1", f"s_lshl_b32 s{sNT}, s{sNT}, 3", f"s_lshr_b32 s{sT2}, s{sT1}, 2", f"s_add_u32 s{sNT}, s{sNT}, s{sT2}")
    a(f"v_lshrrev_b32 v{vT}, 6, v0", f"v_and_b32 v{vLane}, 63, v0", f"v_and_b32 v{vN}, 31, v{vLane}", f"v_readfirstlane_b32 s{sWV}, v{vT}", f"v_lshrrev_b32 v{vHh}, 5, v{vLane}")
    a(f"s_and_b32 s{sW4}, s{sWV}, 3", f"s_cmp_ge_u32 s{sWV}, 4", f"s_cbranch_scc0 {NAME}_M")
    def slot_delta(c):
        s0, s1 = c % NSLOT, (c + 1) % NSLOT
        return ((s1 // 2) - (s0 // 2)) * 2 * SLOT
    def slot_imm(c): return ((c % NSLOT) & 1) * SLOT
    a("s_setprio 3")
    a(f"v_lshlrev_b32 v1, 4, v{vLane}")
    a(f"s_lshl_b32 s{sXso}, s{sW4}, 11", f"s_mov_b32 s{sLX}, s{sXso}", f"s_mul_i32 s{sWso}, s{sW4}, 3072", f"s_add_u32 s{sLW}, s{sWso}, 16384")
    a("s_waitcnt lgkmcnt(0)")
    a(f"s_mul_i32 s{sT0}, s{sNT}, 122880", f"s_add_u32 s{sT0}, s{sT0}, {W1_OFF}")
    srd(a, SRW, sWS, sWS+1, f"s{sT0}", 122880)
    a(f"s_mul_i32 s{sT0}, s{sMT}, 163840", f"s_add_u32 s{sT0}, s{sT0}, {H_OFF}")
    srd(a, SRX, sWS, sWS+1, f"s{sT0}", 163840)
    vq = Q(a, "vmcnt", 63)
    def issue(c):
        base = (c % NSLOT) * SLOT
        for tb in range(2):
            a(f"s_add_u32 m0, s{sLX}, {base + tb*8192}", f"s_add_u32 s{sT0}, s{sXso}, {tb*81920 + c*8192}")
            for e in range(2):
                a(f"buffer_load_dwordx4 v1, s[{SRX}:{SRX+3}], s{sT0} offen offset:{e*1024} lds"); vq.issue(("c", c))
        a(f"s_add_u32 m0, s{sLW}, {base}", f"s_add_u32 s{sT0}, s{sWso}, {c*12288}")
        for r in range(3):
            a(f"buffer_load_dwordx4 v1, s[{SRW}:{SRW+3}], s{sT0} offen offset:{r*1024} lds"); vq.issue(("c", c))
    issue(0); issue(1); issue(2)
    st.mark(a)
    vq.wait(("c", 0)); a("s_barrier")
    st.mark(a)
    issue(3)
    for k in range(1, 10):
        vq.wait(("c", k)); a("s_barrier")
        if k + 3 < 10: issue(k + 3)
    st.mark(a)
    a("s_barrier")
    st.flush(a, sWV, vT)
    a("s_endpgm")
    st.n = 1
    a.label(f"{NAME}_M")
    a("s_setprio 2")
    ACC, WF, XF, vXA, vWA = 0, 48, 60, 68, 69
    SEL, CSA, vST = 72, 76, 80
    vXo = 88
    a("s_waitcnt lgkmcnt(0)")
    srd(a, SRS, sWS, sWS+1, ST_OFF, 8*2048*8)
    a(f"s_lshl_b32 s{sT0}, s{sMT}, 7", f"s_lshl_b32 s{sT1}, s{sW4}, 5", f"s_add_u32 s{sT0}, s{sT0}, s{sT1}", f"s_lshl_b32 s{sT0}, s{sT0}, 3",
      f"v_lshlrev_b32 v{vT}, 16, v{vHh}", f"v_lshl_add_u32 v{vT}, v{vN}, 3, v{vT}")
    for q in range(4):
        a(f"buffer_load_dwordx2 v[{vST+2*q}:{vST+2*q+1}], v{vT}, s[{SRS}:{SRS+3}], s{sT0} offen")
        if q < 3: a(f"s_add_u32 s{sT0}, s{sT0}, 16384")
    srd(a, SRO, sWS, sWS+1, H1_OFF, 32*196608)
    a(f"s_lshl_b32 s{sT0}, s{sMT}, 1", f"s_lshr_b32 s{sT1}, s{sW4}, 1", f"s_add_u32 s{sT0}, s{sT0}, s{sT1}", f"s_mul_i32 s{sOo}, s{sT0}, 196608",
      f"s_and_b32 s{sT1}, s{sW4}, 1", f"s_lshl_b32 s{sT1}, s{sT1}, 9", f"s_add_u32 s{sOo}, s{sOo}, s{sT1}")
    a(f"v_lshlrev_b32 v{vXo}, 10, v{vHh}", f"v_lshl_add_u32 v{vXo}, v{vN}, 4, v{vXo}")
    a(f"s_lshr_b32 s{sT0}, s{sW4}, 1", f"s_lshl_b32 s{sT0}, s{sT0}, 13", f"s_add_u32 s{sT0}, s{sT0}, s{sT1}", f"v_add_u32 v{vXA}, s{sT0}, v{vXo}")
    for sl in range(3):
        a(f"s_add_u32 s{sCB+sl}, s{sW4}, {sl}", f"s_cmp_ge_u32 s{sCB+sl}, 3", f"s_cselect_b32 s{sT0}, 3, 0", f"s_sub_u32 s{sCB+sl}, s{sCB+sl}, s{sT0}",
          f"s_cmp_ge_u32 s{sCB+sl}, 3", f"s_cselect_b32 s{sT0}, 3, 0", f"s_sub_u32 s{sCB+sl}, s{sCB+sl}, s{sT0}")
    a(f"v_bfe_u32 v{vT}, v{vLane}, 2, 2", f"v_lshl_add_u32 v{vT}, v{vHh}, 3, v{vT}", f"v_mul_u32_u24 v{vT}, 192, v{vT}",
      f"v_bfe_u32 v{vT+1}, v{vLane}, 4, 1", f"v_lshl_add_u32 v{vT}, v{vT+1}, 5, v{vT}", f"v_and_b32 v{vT+1}, 3, v{vLane}", f"v_lshl_add_u32 v{vT}, v{vT+1}, 3, v{vT}",
      f"v_add_u32 v{vT}, 16384, v{vT}")
    for sl in range(3): a(f"s_lshl_b32 s{sT0}, s{sCB+sl}, 6", f"v_add_u32 v{vWA+sl}, s{sT0}, v{vT}")
    a(f"v_and_b32 v{vT}, 15, v{vLane}", f"v_bfe_u32 v{vT+1}, v{vLane}, 4, 1", f"v_cmp_eq_u32 vcc, v{vT}, v{vT+1}", f"v_mov_b32 v{vT+2}, 0x3f803f80", "s_nop 0",
      f"v_cndmask_b32 v{SEL}, 0, v{vT+2}, vcc")
    for r in range(1, 4): a(f"v_mov_b32 v{SEL+r}, v{SEL}")
    lq = Q(a, "lgkmcnt", 15)
    def rdX(c, t):
        b = XF + 4*((4*c + t) & 1)
        a(f"ds_read_b128 v[{b}:{b+3}], v{vXA} offset:{slot_imm(c) + t*2048}"); lq.issue(("x", c, t))
    def rdW(c, t, sl):
        off = slot_imm(c) + t*3072
        a(f"ds_read_b64_tr_b16 v[{WF+4*sl}:{WF+4*sl+1}], v{vWA+sl} offset:{off}", f"ds_read_b64_tr_b16 v[{WF+4*sl+2}:{WF+4*sl+3}], v{vWA+sl} offset:{off+768}")
        lq.issue(("w", c, t, sl)); lq.issue(("w", c, t, sl))
    st.mark(a)
    a("s_barrier")
    st.mark(a)
    rdX(0, 0)
    for sl in range(3): rdW(0, 0, sl)
    for c in range(10):
        for t in range(4):
            cn, tn = (c, t + 1) if t < 3 else (c + 1, 0)
            d = slot_delta(c) if (t == 3 and cn < 10) else 0
            if t == 3 and cn < 10:
                a("s_barrier")
                if d: a(f"v_add_u32 v{vXA}, {d & 0xffffffff}, v{vXA}")
            if cn < 10: rdX(cn, tn)
            xb = XF + 4*((4*c + t) & 1)
            for sl in range(3):
                lq.wait(("w", c, t, sl), ("x", c, t))
                acc = f"v[{ACC+16*sl}:{ACC+16*sl+15}]"
                wf = f"v[{WF+4*sl}:{WF+4*sl+3}]"
                first = (c == 0 and t == 0)
                a(f"v_mfma_f32_32x32x16_bf16 {acc}, {wf}, v[{xb}:{xb+3}], {'0' if first else acc}")
                if sl == 0: a(f"v_mfma_f32_16x16x32_bf16 v[{CSA}:{CSA+3}], v[{SEL}:{SEL+3}], {wf}, {'0' if first else f'v[{CSA}:{CSA+3}]'}")
                if d: a(f"v_add_u32 v{vWA+sl}, {d & 0xffffffff}, v{vWA+sl}")
                if cn < 10: rdW(cn, tn, sl)
    st.mark(a)
    mean, rstd, c1 = 90, 92, 94
    a("s_waitcnt vmcnt(0)")
    a(f"v_add_f32 v{mean}, v{vST}, v{vST+2}", f"v_add_f32 v{rstd}, v{vST+1}, v{vST+3}", f"v_add_f32 v{mean+1}, v{vST+4}, v{vST+6}", f"v_add_f32 v{rstd+1}, v{vST+5}, v{vST+7}",
      f"v_add_f32 v{mean}, v{mean}, v{mean+1}", f"v_add_f32 v{rstd}, v{rstd}, v{rstd+1}", f"v_mov_b32 v{mean+1}, v{mean}", f"v_mov_b32 v{rstd+1}, v{rstd}",
      f"s_lshl_b32 s{sT0}, s{sCB}, 7", f"s_add_u32 s{sT0}, s{sT0}, {CSX}", f"v_lshl_add_u32 v{vT}, v{vLane}, 2, s{sT0}",
      f"v_permlane32_swap_b32 v{mean}, v{mean+1}", f"v_permlane32_swap_b32 v{rstd}, v{rstd+1}", "s_mov_b64 exec, 0xffff",
      f"ds_write_b32 v{vT}, v{CSA}", f"ds_write_b32 v{vT}, v{CSA+1} offset:64", "s_mov_b64 exec, -1",
      f"v_add_f32 v{mean}, v{mean}, v{mean+1}", f"v_add_f32 v{rstd}, v{rstd}, v{rstd+1}")
    a(f"v_mul_f32 v{mean}, {fhex(1.0/640)}, v{mean}", f"v_mul_f32 v{rstd}, {fhex(1.0/640)}, v{rstd}",
      f"v_fma_f32 v{rstd}, -v{mean}, v{mean}, v{rstd}", f"v_max_f32 v{rstd}, 0, v{rstd}", f"v_add_f32 v{rstd}, {fhex(EPS)}, v{rstd}", f"v_rsq_f32 v{rstd}, v{rstd}",
      "s_nop 0", f"v_mul_f32 v{c1}, {fhex(-LOG2E)}, v{rstd}")
    a("s_waitcnt lgkmcnt(0)", "s_barrier")
    CSR = 96
    CS = [96, 48, 96]
    a(f"v_lshlrev_b32 v{vT}, 4, v{vHh}", f"v_add_u32 v{vT}, {CSX}, v{vT}")
    for sl in range(3): a(f"s_lshl_b32 s{sT0}, s{sCB+sl}, 7", f"v_add_u32 v{vT+1+sl}, s{sT0}, v{vT}")
    def rdCS(sl):
        for j in range(4): a(f"ds_read_b128 v[{CS[sl]+4*j}:{CS[sl]+4*j+3}], v{vT+1+sl} offset:{j*32}")
    rdCS(0); rdCS(1)
    Z, PK, one = 120, 124, 132
    a(f"v_mov_b32 v{one}, 1.0", f"v_mov_b32 v{one+1}, 1.0")
    for sl in range(3):
        for jj in range(2):
            for jq in range(2):
                j = 2*jj + jq
                a(f"s_waitcnt lgkmcnt({(7 - j) if sl == 0 else (7 - j) if sl == 1 else (3 - j)})")
                r = ACC + 16*sl + 4*j
                cs = CS[sl] + 4*j
                for h2 in range(2):
                    a(f"v_pk_fma_f32 v[{r+2*h2}:{r+2*h2+1}], v[{mean}:{mean+1}], v[{cs+2*h2}:{cs+2*h2+1}], v[{r+2*h2}:{r+2*h2+1}] op_sel_hi:[0,1,1] neg_lo:[1,0,0] neg_hi:[1,0,0]")
                for h2 in range(2):
                    a(f"v_pk_mul_f32 v[{Z+2*h2}:{Z+2*h2+1}], v[{c1}:{c1+1}], v[{r+2*h2}:{r+2*h2+1}] op_sel_hi:[0,1]")
                for i in range(4): a(f"v_exp_f32 v{Z+i}, v{Z+i}")
                for h2 in range(2):
                    a(f"v_pk_mul_f32 v[{r+2*h2}:{r+2*h2+1}], v[{rstd}:{rstd+1}], v[{r+2*h2}:{r+2*h2+1}] op_sel_hi:[0,1]")
                for h2 in range(2):
                    a(f"v_pk_add_f32 v[{Z+2*h2}:{Z+2*h2+1}], v[{Z+2*h2}:{Z+2*h2+1}], v[{one}:{one+1}]")
                for i in range(4): a(f"v_rcp_f32 v{Z+i}, v{Z+i}")
                a("s_nop 0")
                for h2 in range(2):
                    a(f"v_pk_mul_f32 v[{r+2*h2}:{r+2*h2+1}], v[{r+2*h2}:{r+2*h2+1}], v[{Z+2*h2}:{Z+2*h2+1}]")
                p = PK + 4*jj + 2*jq
                a(f"v_cvt_pk_bf16_f32 v{p}, v{r}, v{r+1}", f"v_cvt_pk_bf16_f32 v{p+1}, v{r+2}, v{r+3}")
            p = PK + 4*jj
            a(f"s_mul_i32 s{sT0}, s{sNT}, 12", f"s_lshl_b32 s{sT1}, s{sCB+sl}, 2", f"s_add_u32 s{sT0}, s{sT0}, s{sT1}", f"s_add_u32 s{sT0}, s{sT0}, {2*jj}",
              f"s_lshl_b32 s{sT0}, s{sT0}, 10", f"s_add_u32 s{sT0}, s{sT0}, s{sOo}",
              f"buffer_store_dwordx4 v[{p}:{p+3}], v{vXo}, s[{SRO}:{SRO+3}], s{sT0} offen")
        if sl == 0: rdCS(2)
    st.flush(a, sWV, vT)
    a.label(f"{NAME}_end")
    a("s_endpgm")
    return a, kernel_desc(NAME, NV, NV), (NAME, 256, 512, CSX + 1024)
if __name__ == "__main__":
    a, d, l = gen()
    for p in check_hazards(a.text(), l[0]): print(p)
    print(len(a.l), "lines", l)
```

```python
from gen_common import *
def gen(which, stamp=None, abl=()):
    NAME = "k3_oproj_kernel" if which == 3 else "k5_ffn2_kernel"
    KT = 640 if which == 3 else 1536
    U = KT // 8
    NS = KT // 64
    NC = NS // 2
    NSLOT = 5 if which == 3 else 7
    DEPTH = 2 if which == 3 else 3
    XD = 6
    SCR = NSLOT * 20480
    XOFF = O_OFF if which == 3 else H1_OFF
    WOFF, WTILE = (WO_OFF, 102400) if which == 3 else (W2_OFF, 245760)
    a = Asm(); st = Stamps(stamp)
    kernel_header(a, NAME); st.mark(a)
    sP1, sWS = 6, 8
    SRW, SRX, SRR, SRD, SRS = 12, 16, 20, 24, 44
    sMT, sNT, sWV, sTH, sKH = 28, 29, 30, 31, 32
    sT0, sT1, sT2 = 33, 34, 35
    sWso, sXso, sLW, sRo, sDo = 36, 37, 38, 39, 40
    ACC = 0; WF = 40
    vX = 65
    vWA = 67
    vLane, vN, vG = 70, 71, 72
    vR = 74
    vT = 84
    vRo, vDo = 108, 109
    NV = 112
    NA = NS * 2 * 4
    NVT = 256 if which == 5 else NV + NA
    a(f"s_cmp_ge_u32 s2, 256", f"s_cbranch_scc1 {NAME}_end")
    io_arg = 0 if which == 3 else 48
    a(f"s_load_dwordx2 s[{sP1}:{sP1+1}], s[0:1], {io_arg}", f"s_load_dwordx2 s[{sWS}:{sWS+1}], s[0:1], 64")
    a(f"s_and_b32 s{sT0}, s2, 7", f"s_lshr_b32 s{sT1}, s2, 3",
      f"s_lshr_b32 s{sMT}, s{sT0}, 1", f"s_lshl_b32 s{sMT}, s{sMT}, 3", f"s_and_b32 s{sT2}, s{sT1}, 7", f"s_add_u32 s{sMT}, s{sMT}, s{sT2}",
      f"s_and_b32 s{sNT}, s{sT0}, 1", f"s_lshl_b32 s{sNT}, s{sNT}, 2", f"s_lshr_b32 s{sT2}, s{sT1}, 3", f"s_add_u32 s{sNT}, s{sNT}, s{sT2}")
    a(f"v_lshrrev_b32 v{vT}, 6, v0", f"v_and_b32 v{vLane}, 63, v0", f"v_and_b32 v{vN}, 15, v{vLane}", f"v_readfirstlane_b32 s{sWV}, v{vT}", f"v_lshrrev_b32 v{vG}, 4, v{vLane}")
    a(f"s_and_b32 s{sTH}, s{sWV}, 1", f"s_bfe_u32 s{sKH}, s{sWV}, 0x10001", f"s_cmp_ge_u32 s{sWV}, 4", f"s_cbranch_scc0 {NAME}_C")
    a("s_setprio 3")
    a(f"v_lshlrev_b32 v1, 4, v{vLane}")
    a(f"s_mul_i32 s{sWso}, s{sKH}, {NS}", f"s_add_u32 s{sWso}, s{sWso}, s{sTH}", f"s_mul_i32 s{sWso}, s{sWso}, 5120",
      f"s_mul_i32 s{sLW}, s{sKH}, 10240", f"s_mul_i32 s{sT0}, s{sTH}, 5120", f"s_add_u32 s{sLW}, s{sLW}, s{sT0}")
    a("s_waitcnt lgkmcnt(0)")
    a(f"s_mul_i32 s{sT0}, s{sNT}, {WTILE}", f"s_add_u32 s{sT0}, s{sT0}, {WOFF}")
    srd(a, SRW, sWS, sWS+1, f"s{sT0}", WTILE)
    vq = Q(a, "vmcnt", 63)
    def issue(c):
        slot = c % NSLOT
        a(f"s_add_u32 m0, s{sLW}, {slot*20480}", f"s_add_u32 s{sT0}, s{sWso}, {c*10240}")
        for r in range(4):
            a(f"buffer_load_dwordx4 v1, s[{SRW}:{SRW+3}], s{sT0} offen offset:{r*1024} lds"); vq.issue(("c", c))
        a(f"s_add_u32 m0, s{sLW}, {slot*20480 + 4096}", f"s_add_u32 s{sT0}, s{sWso}, {c*10240 + 4096}",
          f"buffer_load_dwordx4 v1, s[{SRW}:{SRW+3}], s{sT0} offen lds"); vq.issue(("c", c))
    for c in range(DEPTH): issue(c)
    st.mark(a)
    for k in range(NC):
        vq.wait(("c", k)); a("s_barrier")
        if k == 0: st.mark(a)
        if k + DEPTH < NC: issue(k + DEPTH)
    st.mark(a)
    a("s_barrier")
    st.flush(a, sWV, vT)
    a("s_endpgm")
    st.n = 1
    a.label(f"{NAME}_C")
    a(f"v_lshlrev_b32 v{vT}, 10, v{vG}", f"v_lshl_add_u32 v{vT}, v{vN}, 4, v{vT}", f"s_lshl_b32 s{sT0}, s{sTH}, 9", f"v_add_u32 v{vT}, s{sT0}, v{vT}",
      f"s_lshl_b32 s{sT0}, s{sKH}, 8", f"v_add_u32 v{vX}, s{sT0}, v{vT}", f"s_xor_b32 s{sT0}, s{sT0}, 256", f"v_add_u32 v{vX+1}, s{sT0}, v{vT}")
    a(f"s_mul_i32 s{sXso}, s{sKH}, {NS*4096}")
    a("s_waitcnt lgkmcnt(0)")
    a(f"s_mul_i32 s{sT0}, s{sMT}, {U*1024}", f"s_add_u32 s{sT0}, s{sT0}, {XOFF}")
    srd(a, SRX, sWS, sWS+1, f"s{sT0}", U*1024)
    vq = Q(a, "vmcnt", 63); lq = Q(a, "lgkmcnt", 15)
    XR = min(NS, (NVT - NV) // 8)
    def xreg(s_, tb): return ((s_ % XR) * 2 + tb) * 4
    def issueX(s_):
        a(f"s_add_u32 s{sT1}, s{sXso}, {s_*4096}")
        for tb in range(2):
            f = xreg(s_, tb)
            a(f"buffer_load_dwordx4 a[{f}:{f+3}], v{vX+tb}, s[{SRX}:{SRX+3}], s{sT1} offen"); vq.issue(("x", s_))
    for s_ in range(min(XD, NS)): issueX(s_)
    vRM, vUM = vRo, vDo
    a(f"v_mul_u32_u24 v{vRM}, 1280, v{vN}", f"v_lshl_add_u32 v{vRM}, v{vG}, 3, v{vRM}",
      f"v_lshrrev_b32 v{vT}, 1, v{vG}", f"v_lshlrev_b32 v{vT}, 10, v{vT}", f"v_and_b32 v{vT+1}, 1, v{vG}", f"v_lshl_add_u32 v{vT}, v{vT+1}, 3, v{vT}",
      f"v_lshl_add_u32 v{vUM}, v{vN}, 4, v{vT}")
    sRM, sUM = sRo, sDo
    a(f"s_lshl_b32 s{sT0}, s{sTH}, 5", f"s_lshl_b32 s{sT1}, s{sKH}, 4", f"s_add_u32 s{sT0}, s{sT0}, s{sT1}",
      f"s_lshl_b32 s{sUM}, s{sT0}, 4", f"s_mul_i32 s{sT1}, s{sMT}, 81920", f"s_add_u32 s{sUM}, s{sUM}, s{sT1}", f"s_mul_i32 s{sT1}, s{sNT}, 10240", f"s_add_u32 s{sUM}, s{sUM}, s{sT1}",
      f"s_lshl_b32 s{sT1}, s{sMT}, 6", f"s_add_u32 s{sT2}, s{sT0}, s{sT1}", f"s_mul_i32 s{sRM}, s{sT2}, 1280", f"s_mul_i32 s{sT1}, s{sNT}, 160", f"s_add_u32 s{sRM}, s{sRM}, s{sT1}")
    sSt = 41
    if which == 3:
        a(f"s_lshl_b32 s{sSt}, s{sT2}, 3", f"s_lshl_b32 s{sT1}, s{sNT}, 14", f"s_add_u32 s{sSt}, s{sSt}, s{sT1}")
    SR_RM, SR_UM = (SRR, SRD)
    srd(a, SR_RM, sP1, sP1+1, None, S*D*2)
    srd(a, SR_UM, sWS, sWS+1, H_OFF, 32*81920)
    for cb in range(5):
        if which == 3:
            a(f"buffer_load_dwordx2 v[{vR+2*cb}:{vR+2*cb+1}], v{vRM}, s[{SR_RM}:{SR_RM+3}], s{sRM} offen offset:{cb*32}")
        else:
            a(f"s_add_u32 s{sT0}, s{sUM}, {cb*2048}", f"buffer_load_dwordx2 v[{vR+2*cb}:{vR+2*cb+1}], v{vUM}, s[{SR_UM}:{SR_UM+3}], s{sT0} offen")
        vq.issue("res")
    a(f"v_lshrrev_b32 v{vT}, 1, v{vG}", f"v_lshlrev_b32 v{vT}, 4, v{vT}", f"v_and_b32 v{vT+1}, 1, v{vG}", f"v_lshl_add_u32 v{vT}, v{vT+1}, 2, v{vT}",
      f"v_lshrrev_b32 v{vT+1}, 2, v{vN}", f"v_add_u32 v{vT}, v{vT}, v{vT+1}", f"v_mul_u32_u24 v{vT}, 160, v{vT}",
      f"v_and_b32 v{vT+1}, 3, v{vN}", f"v_lshl_add_u32 v{vT}, v{vT+1}, 3, v{vT}", f"s_mul_i32 s{sT0}, s{sKH}, 10240", f"v_add_u32 v{vWA}, s{sT0}, v{vT}",
      f"v_add_u32 v{vWA+1}, 61440, v{vWA}", f"v_add_u32 v{vWA+2}, 122880, v{vWA}")
    def rdW(s_, cb):
        c, p = s_ // 2, s_ & 1
        slot = c % NSLOT
        base = vWA + slot // 3
        off = (slot % 3) * 20480 + p * 5120 + cb * 32
        a(f"ds_read_b64_tr_b16 v[{WF+4*cb}:{WF+4*cb+1}], v{base} offset:{off}", f"ds_read_b64_tr_b16 v[{WF+4*cb+2}:{WF+4*cb+3}], v{base} offset:{off+1280}")
        lq.issue(("w", s_, cb)); lq.issue(("w", s_, cb))
    st.mark(a)
    a("s_barrier")
    st.mark(a)
    for cb in range(5): rdW(0, cb)
    for s_ in range(NS):
        c, p = s_ // 2, s_ & 1
        if p == 1 and c + 1 < NC: a("s_barrier")
        vq.wait(("x", s_))
        for cb in range(5):
            lq.wait(("w", s_, cb))
            for tb in range(2):
                f = xreg(s_, tb)
                acc = ACC + 20*tb + 4*cb
                cin = "0" if s_ == 0 else f"v[{acc}:{acc+3}]"
                a(f"v_mfma_f32_16x16x32_bf16 v[{acc}:{acc+3}], v[{WF+4*cb}:{WF+4*cb+3}], a[{f}:{f+3}], {cin}")
            if s_ + 1 < NS: rdW(s_ + 1, cb)
        if s_ + XD < NS:
            assert XR >= NS or XR > XD
            issueX(s_ + XD)
    st.mark(a)
    a(f"v_lshlrev_b32 v{vT}, 4, v{vLane}", f"s_mul_i32 s{sT0}, s{sWV}, 5120", f"s_add_u32 s{sT0}, s{sT0}, {SCR}", f"v_add_u32 v{vT+1}, s{sT0}, v{vT}",
      f"s_xor_b32 s{sT1}, s{sWV}, 2", f"s_mul_i32 s{sT1}, s{sT1}, 5120", f"s_add_u32 s{sT1}, s{sT1}, {SCR}", f"v_add_u32 v{vT+2}, s{sT1}, v{vT}", "s_nop 1")
    for cb in range(5): a(f"ds_write_b128 v{vT+1}, v[{ACC+20+4*cb}:{ACC+20+4*cb+3}] offset:{cb*1024}")
    a("s_waitcnt lgkmcnt(0)", "s_barrier")
    for cb in range(5): a(f"ds_read_b128 v[{ACC+20+4*cb}:{ACC+20+4*cb+3}], v{vT+2} offset:{cb*1024}")
    vq.wait("res")
    S1, S2 = vT + 12, vT + 14
    for cb in range(5):
        a(f"s_waitcnt lgkmcnt({4-cb})")
        r0 = vR + 2*cb
        t = vT + 4 + 4*(cb & 1)
        a(f"v_lshlrev_b32 v{t}, 16, v{r0}", f"v_and_b32 v{t+1}, 0xffff0000, v{r0}", f"v_lshlrev_b32 v{t+2}, 16, v{r0+1}", f"v_and_b32 v{t+3}, 0xffff0000, v{r0+1}")
        for i in range(4): a(f"v_add_f32 v{ACC+4*cb+i}, v{ACC+4*cb+i}, v{ACC+20+4*cb+i}")
        for i in range(4): a(f"v_add_f32 v{ACC+4*cb+i}, v{ACC+4*cb+i}, v{t+i}")
        a(f"v_cvt_pk_bf16_f32 v{r0}, v{ACC+4*cb}, v{ACC+4*cb+1}", f"v_cvt_pk_bf16_f32 v{r0+1}, v{ACC+4*cb+2}, v{ACC+4*cb+3}")
        if which == 3:
            a(f"s_add_u32 s{sT0}, s{sUM}, {cb*2048}", f"buffer_store_dwordx2 v[{r0}:{r0+1}], v{vUM}, s[{SR_UM}:{SR_UM+3}], s{sT0} offen")
        else:
            a(f"buffer_store_dwordx2 v[{r0}:{r0+1}], v{vRM}, s[{SR_RM}:{SR_RM+3}], s{sRM} offen offset:{cb*32}")
    if which == 3:
        v = [ACC + k for k in range(20)]
        a(f"v_add_f32 v{S1}, v{v[0]}, v{v[1]}", f"v_mul_f32 v{S2}, v{v[0]}, v{v[0]}", f"v_add_f32 v{S1+1}, v{v[2]}, v{v[3]}", f"v_mul_f32 v{S2+1}, v{v[1]}, v{v[1]}")
        for k in range(2, 20): a(f"v_fma_f32 v{S2+(k&1)}, v{v[k]}, v{v[k]}, v{S2+(k&1)}")
        for k in range(4, 20): a(f"v_add_f32 v{S1+(k&1)}, v{S1+(k&1)}, v{v[k]}")
        a(f"v_add_f32 v{S1}, v{S1}, v{S1+1}", f"v_add_f32 v{S2}, v{S2}, v{S2+1}")
        for swap in ("v_permlane32_swap_b32", "v_permlane16_swap_b32"):
            a(f"v_mov_b32 v{S1+1}, v{S1}", f"v_mov_b32 v{S2+1}, v{S2}", "s_nop 1", f"{swap} v{S1}, v{S1+1}", f"{swap} v{S2}, v{S2+1}", "s_nop 1",
              f"v_add_f32 v{S1}, v{S1}, v{S1+1}", f"v_add_f32 v{S2}, v{S2}, v{S2+1}")
        srd(a, SRS, sWS, sWS+1, ST_OFF, 8*2048*8)
        a(f"v_mov_b32 v{S1+1}, v{S2}", f"v_lshlrev_b32 v{vT}, 3, v{vN}", "s_mov_b64 exec, 0xffff",
          f"buffer_store_dwordx2 v[{S1}:{S1+1}], v{vT}, s[{SRS}:{SRS+3}], s{sSt} offen")
    st.flush(a, sWV, vT)
    a.label(f"{NAME}_end")
    a("s_endpgm")
    return a, kernel_desc(NAME, NVT, NV), (NAME, 256, 512, SCR + 20480)
if __name__ == "__main__":
    for w in (3, 5):
        a, d, l = gen(w)
        for p in check_hazards(a.text(), l[0]): print(p)
        print(len(a.l), "lines", l)
```

```python
import sys
from build import build
import gen_k1, gen_k2
ts = "ts" in sys.argv
abl = tuple(x for x in sys.argv[1:] if x != "ts")
mods = [gen_k1.gen(stamp=0 if ts else None, abl=abl, prefetch_code=(None if 'nocpf' in abl else 8)), gen_k2.gen(stamp=1 if ts else None, abl=abl)]
try:
    import gen_rg, gen_k4
    mods += [gen_rg.gen(3, stamp=2 if ts else None, abl=abl), gen_k4.gen(stamp=3 if ts else None, abl=abl), gen_rg.gen(5, stamp=4 if ts else None, abl=abl)]
except ImportError as e:
    print("partial", e)
name = ("all_ts" if ts else "all") + "".join("_" + x for x in abl)
build(mods, name + ".s")
import mk; mk.mk(name + ".s")
```

```python
from asmlib import *
import math
S, D, H, DH, F = 2048, 640, 32, 20, 1536
KU_OFF = 0
V_OFF = 32 * 81920
Q_OFF = 32 * 163840
O_OFF = Q_OFF + 32 * 81920
H_OFF = O_OFF + 32 * 81920
H1_OFF = H_OFF + 32 * 81920
WO_OFF = H1_OFF + 32 * 196608
W2_OFF = WO_OFF + 8 * 102400
W1_OFF = W2_OFF + 8 * 245760
ST_OFF = W1_OFF + 16 * 122880
CNT_OFF = ST_OFF + 8 * 2048 * 8
CNT_A, CNT_B, CNT_C, CNT_R, CNT_T = CNT_OFF, CNT_OFF + 2048, CNT_OFF + 6144, CNT_OFF + 10240, CNT_OFF + 14336
ST1_OFF = CNT_OFF + 24576
WS_END = ST1_OFF + 2048 * 8
QSCALE = (DH ** -0.5) * math.log2(math.e)
EPS = 1e-5
PREFIX = "sequential_preLN__softmax_full_mha__dense_activation_silu__prompt"
def f2u(x):
    import struct
    return struct.unpack("<I", struct.pack("<f", x))[0]
def fhex(x): return "0x%08x" % f2u(x)

def srd(a, base, lo, hi, off_sgpr, nrec):
    if off_sgpr is None:
        a(f"s_mov_b32 s{base}, s{lo}", f"s_and_b32 s{base+1}, s{hi}, 0xffff")
    else:
        a(f"s_add_u32 s{base}, s{lo}, {off_sgpr}", f"s_addc_u32 s{base+1}, s{hi}, 0", f"s_and_b32 s{base+1}, s{base+1}, 0xffff")
    a(f"s_mov_b32 s{base+2}, {nrec}", f"s_mov_b32 s{base+3}, 0x20000")

def kernel_header(a, name):
    a(f".globl {name}", ".p2align 8", f".type {name},@function")
    a.label(name)
def kernel_desc(name, vgpr, accum, sgpr=102):
    return "\n".join([".p2align 6", f".amdhsa_kernel {name}", f"  .amdhsa_next_free_vgpr {vgpr}", f"  .amdhsa_next_free_sgpr {sgpr}",
        f"  .amdhsa_accum_offset {accum}", "  .amdhsa_group_segment_fixed_size 0", "  .amdhsa_kernarg_size 72", "  .amdhsa_user_sgpr_count 2",
        "  .amdhsa_user_sgpr_kernarg_segment_ptr 1", "  .amdhsa_system_sgpr_workgroup_id_x 1", ".end_amdhsa_kernel"]) + "\n"

def csel(a, dst, x, y):
    a(f"s_mov_b32 {dst}, {y}", f"s_cselect_b32 {dst}, {x}, {dst}")

TS_OFF = 32 << 20
class Stamps:
    def __init__(self, kidx): self.k = kidx; self.n = 0
    def mark(self, a):
        if self.k is None: return
        a("s_memrealtime s[98:99]", "s_memtime s[96:97]", "s_waitcnt lgkmcnt(0)", f"s_mov_b32 s{68+self.n}, s98", f"s_mov_b32 s{76+self.n}, s96")
        self.n += 1
        assert self.n <= 8
    def flush(self, a, wave_sgpr, vtmp):
        if self.k is None: return
        self.mark(a)
        a("s_load_dwordx2 s[96:97], s[0:1], 64", "s_waitcnt lgkmcnt(0)")
        a(f"s_lshl_b32 s98, s2, 4", f"s_add_u32 s98, s98, s{wave_sgpr}", f"s_lshl_b32 s98, s98, 6", f"s_add_u32 s98, s98, {TS_OFF + self.k * 256 * 16 * 64}")
        a("s_mov_b64 exec, 1")
        for base, off in ((68, 0), (76, 32)):
            for i in range(8): a(f"v_mov_b32 v{vtmp+i}, s{base+i}" if i < self.n else f"v_mov_b32 v{vtmp+i}, 0")
            a(f"v_mov_b32 v{vtmp+8}, s98", f"global_store_dwordx4 v{vtmp+8}, v[{vtmp}:{vtmp+3}], s[96:97] offset:{off}", f"global_store_dwordx4 v{vtmp+8}, v[{vtmp+4}:{vtmp+7}], s[96:97] offset:{off+16}", "s_waitcnt vmcnt(0)")

class Q:
    def __init__(self, a, name, maxn): self.a, self.name, self.maxn, self.ops = a, name, maxn, []
    def issue(self, tag): self.ops.append(tag)
    def wait(self, *tags, emit=True):
        last = -1
        for i, t in enumerate(self.ops):
            if t in tags: last = i
        n = len(self.ops) - 1 - last
        if last < 0: return None
        n = min(n, self.maxn)
        if emit: self.a(f"s_waitcnt {self.name}({n})")
        self.ops = self.ops[last+1:] if n == len(self.ops) - 1 - last else self.ops[len(self.ops)-n:]
        return n
    def flush(self): self.ops = []

def emit_code_prefetch(a, lab_from, lab_to, s_idx, vlane, vt, st):
    u = f"cpf{len(a.l)}"
    a(f"s_getpc_b64 s[{st}:{st+1}]")
    a.label(f"{u}_pc")
    a(f"s_sub_u32 s{st}, s{st}, {u}_pc-{lab_from}", f"s_subb_u32 s{st+1}, s{st+1}, 0")
    a(f"s_lshl_b32 s{st+2}, s{s_idx}, 13", f"v_lshl_add_u32 v{vt}, v{vlane}, 7, s{st+2}", f"v_min_u32 v{vt}, {lab_to}-{lab_from}-4, v{vt}",
      f"global_load_dword v{vt+1}, v{vt}, s[{st}:{st+1}]")

class WideStamps(Stamps):
    def mark(self, a):
        if self.k is None: return
        a("s_memrealtime s[98:99]", "s_waitcnt lgkmcnt(0)", f"s_mov_b32 s{68+self.n}, s98")
        self.n += 1
        assert self.n <= 16
    def flush(self, a, wave_sgpr, vtmp):
        if self.k is None: return
        self.mark(a)
        a("s_load_dwordx2 s[96:97], s[0:1], 64", "s_waitcnt lgkmcnt(0)")
        a(f"s_lshl_b32 s98, s2, 4", f"s_add_u32 s98, s98, s{wave_sgpr}", f"s_lshl_b32 s98, s98, 6", f"s_add_u32 s98, s98, {TS_OFF + self.k * 256 * 16 * 64}")
        a("s_mov_b64 exec, 1")
        for base, off in ((68, 0), (76, 32)):
            for i in range(8): a(f"v_mov_b32 v{vtmp+i}, s{base+i}" if base - 68 + i < self.n else f"v_mov_b32 v{vtmp+i}, 0")
            a(f"v_mov_b32 v{vtmp+8}, s98", f"global_store_dwordx4 v{vtmp+8}, v[{vtmp}:{vtmp+3}], s[96:97] offset:{off}", f"global_store_dwordx4 v{vtmp+8}, v[{vtmp+4}:{vtmp+7}], s[96:97] offset:{off+16}", "s_waitcnt vmcnt(0)")
class DbgStamps(Stamps):
    def mark(self, a):
        if self.n == 0 and not getattr(self, "started", False):
            a("s_memrealtime s[98:99]", "s_waitcnt lgkmcnt(0)", "s_mov_b32 s68, s98")
            self.started = True
        self.n += 1
    def flush(self, a, wave_sgpr, vtmp):
        a("s_memrealtime s[98:99]", "s_load_dwordx2 s[96:97], s[0:1], 56", "s_waitcnt lgkmcnt(0)")
        a(f"s_sub_u32 s96, s96, {self.k * 512}", "s_subb_u32 s97, s97, 0", "s_mov_b64 exec, 1",
          f"s_not_b32 s68, s68", f"v_mov_b32 v{vtmp}, s68", f"v_mov_b32 v{vtmp+1}, s98", f"v_mov_b32 v{vtmp+2}, {self.k * 8}",
          f"global_atomic_umax v{vtmp+2}, v{vtmp}, s[96:97]", f"global_atomic_umax v{vtmp+2}, v{vtmp+1}, s[96:97] offset:4", "s_not_b32 s68, s68")

class MinStamps(WideStamps):
    def mark(self, a, force=False):
        if self.k is None: return
        if self.n == 0 and not getattr(self, "started", False):
            self.started = True
            a("s_memrealtime s[98:99]", "s_waitcnt lgkmcnt(0)", "s_mov_b32 s68, s98")
        self.n = 1
    def flush(self, a, wave_sgpr, vtmp):
        if self.k is None: return
        a("s_memrealtime s[98:99]", "s_load_dwordx2 s[96:97], s[0:1], 64", "s_waitcnt lgkmcnt(0)", "s_mov_b32 s69, s98")
        a(f"s_lshl_b32 s98, s2, 4", f"s_add_u32 s98, s98, s{wave_sgpr}", f"s_lshl_b32 s98, s98, 6", f"s_add_u32 s98, s98, {TS_OFF + self.k * 256 * 16 * 64}")
        a("s_mov_b64 exec, 1", f"v_mov_b32 v{vtmp}, s68", f"v_mov_b32 v{vtmp+1}, s69", f"v_mov_b32 v{vtmp+2}, s98", f"global_store_dwordx2 v{vtmp+2}, v[{vtmp}:{vtmp+1}], s[96:97]")
```

```python
from gen_common import *
LOG2E = math.log2(math.e)
SPIN_MAX = 1 << 18
WO_LDS = 40960
SLOT5 = [6, 0, 1, 2, 3, 4, 5, 7, 6, 0, 1, 2]
SCR = 143360
def make(abl=()):
    def opt(prefix, default):
        for x in abl:
            if x.startswith(prefix): return x[len(prefix):]
        return default
    WSTART = opt("ws_", "split")
    ARR = opt("arr_", "bar")
    THR = int(opt("thr_", "0"))
    def fused(a, st, L):
        import gen_k2
        NAME = gen_k2.NAME
        sWS, sWV = L["sWS"], L["sWV"]
        vLaneK2, sQB = L["vLane"], L["sQB"]
        ws = f"s[{sWS}:{sWS+1}]"
        sT0, sT1, sT2, sT3 = 30, 31, 32, 33
        SRW, SRX, SRR, SRD, SRS = 8, 12, 16, 40, 44
        sMT, sNT, sTH, sKH, sW4 = 24, 25, 26, 27, 28
        sCnt, sSpin = 34, 35
        sWso, sXso, sLW, sRM, sUM, sSt, sOo = 36, 37, 38, 39, 48, 49, 50
        sCB = 52
        sIO = 56
        vLane = 245; vH = 246
        uid = [0]
        def arrive(off_sgpr, v):
            a("s_mov_b64 exec, 1", f"v_mov_b32 v{v}, s{off_sgpr}", f"v_mov_b32 v{v+1}, 1", f"global_atomic_add v{v}, v{v+1}, {ws} sc1", "s_mov_b64 exec, -1")
        LC_A, LC_B, LC_C = 140000, 140004, SCR + 1024
        def arrive_last(lds_word, nwaves, off_sgpr, v):
            uid[0] += 1; u = f"{NAME}_arr{uid[0]}"
            a("s_mov_b64 exec, 1", f"v_mov_b32 v{v}, {lds_word}", f"v_mov_b32 v{v+1}, 1", f"ds_add_rtn_u32 v{v+2}, v{v}, v{v+1}", "s_waitcnt lgkmcnt(0)",
              f"v_cmp_eq_u32 vcc, {nwaves-1}, v{v+2}", f"s_cbranch_vccz {u}",
              f"v_mov_b32 v{v}, s{off_sgpr}", f"global_atomic_add v{v}, v{v+1}, {ws} sc1")
            a.label(u); a("s_mov_b64 exec, -1")
        def publish(lc, nwaves, v, is_consumer=True):
            if "fine" in abl and lc == LC_B: st.mark(a)
            if WSTART == "split":
                a("s_barrier", "s_waitcnt vmcnt(0)", "s_barrier"); wave0(lambda: arrive(sCnt, v)); return
            if WSTART == "issued": a("s_barrier")
            a("s_waitcnt vmcnt(0)")
            if ARR == "lds":
                arrive_last(lc, nwaves, sCnt, v)
                if WSTART == "drained": a("s_barrier")
            else:
                a("s_barrier"); wave0(lambda: arrive(sCnt, v))
        def loader_gate():
            if WSTART == "issued": a("s_barrier")
            if WSTART == "drained": a("s_barrier")
        def loader_post():
            if ARR == "bar" and WSTART != "drained": a("s_barrier")
        def look(off_sgpr, v):
            a("s_mov_b64 exec, 1", f"v_mov_b32 v{v}, s{off_sgpr}", f"global_load_dword v{v+1}, v{v}, {ws} sc1", "s_mov_b64 exec, -1")
        def poll(off_sgpr, target, v, looked=False):
            uid[0] += 1; u = f"{NAME}_poll{uid[0]}"
            if "poll3" in abl:
                gap = opt("pg_", "2")
                a("s_mov_b64 exec, 1", f"v_mov_b32 v{v}, s{off_sgpr}", f"s_mov_b32 s{sSpin}, {SPIN_MAX}")
                a(f"global_load_dword v{v+1}, v{v}, {ws} sc1", f"s_sleep {gap}", f"global_load_dword v{v+2}, v{v}, {ws} sc1", f"s_sleep {gap}")
                a.label(u)
                for k in range(3):
                    a(f"global_load_dword v{v+1+(k+2)%3}, v{v}, {ws} sc1", "s_waitcnt vmcnt(2)", f"v_cmp_gt_u32 vcc, {target}, v{v+1+k}", f"s_cbranch_vccz {u}_d")
                a(f"s_sub_u32 s{sSpin}, s{sSpin}, 1", f"s_cmp_lg_u32 s{sSpin}, 0", f"s_cbranch_scc1 {u}")
                a.label(f"{u}_d"); a("s_mov_b64 exec, -1")
                return
            if looked:
                a("s_mov_b64 exec, 1", f"s_mov_b32 s{sSpin}, {SPIN_MAX}", f"v_cmp_gt_u32 vcc, {target}, v{v+1}", f"s_cbranch_vccz {u}_d")
            else:
                a("s_mov_b64 exec, 1", f"v_mov_b32 v{v}, s{off_sgpr}", f"s_mov_b32 s{sSpin}, {SPIN_MAX}")
            a.label(u)
            a(f"global_load_dword v{v+1}, v{v}, {ws} sc1", "s_waitcnt vmcnt(0)", f"v_cmp_gt_u32 vcc, {target}, v{v+1}", f"s_cbranch_vccz {u}_d",
              *([f"s_sleep {opt('sl_', '0')}"] if opt('sl_', '0') != '0' else []), f"s_sub_u32 s{sSpin}, s{sSpin}, 1", f"s_cmp_lg_u32 s{sSpin}, 0", f"s_cbranch_scc1 {u}")
            a.label(f"{u}_d"); a("s_mov_b64 exec, -1")
        def wave0(fn):
            uid[0] += 1; u = f"{NAME}_w0_{uid[0]}"
            a(f"s_cmp_lg_u32 s{sWV}, 0", f"s_cbranch_scc1 {u}"); fn(); a.label(u)
        def tile_rg():
            a(f"s_and_b32 s{sT0}, s2, 7", f"s_lshr_b32 s{sT1}, s2, 3",
              f"s_lshr_b32 s{sMT}, s{sT0}, 1", f"s_lshl_b32 s{sMT}, s{sMT}, 3", f"s_and_b32 s{sT2}, s{sT1}, 7", f"s_add_u32 s{sMT}, s{sMT}, s{sT2}",
              f"s_and_b32 s{sNT}, s{sT0}, 1", f"s_lshl_b32 s{sNT}, s{sNT}, 2", f"s_lshr_b32 s{sT2}, s{sT1}, 3", f"s_add_u32 s{sNT}, s{sNT}, s{sT2}")
        def tile_f1():
            a(f"s_and_b32 s{sT0}, s2, 7", f"s_lshr_b32 s{sT1}, s2, 3",
              f"s_lshr_b32 s{sMT}, s{sT0}, 1", f"s_lshl_b32 s{sMT}, s{sMT}, 2", f"s_and_b32 s{sT2}, s{sT1}, 3", f"s_add_u32 s{sMT}, s{sMT}, s{sT2}",
              f"s_and_b32 s{sNT}, s{sT0}, 1", f"s_lshl_b32 s{sNT}, s{sNT}, 3", f"s_lshr_b32 s{sT2}, s{sT1}, 2", f"s_add_u32 s{sNT}, s{sNT}, s{sT2}")
        a("s_mov_b64 exec, -1")
        a(f"v_mov_b32 v{vLane}, v{vLaneK2}")
        a(f"s_lshl_b32 s{sCnt}, s{sQB}, 8", f"s_add_u32 s{sCnt}, s{sCnt}, {CNT_A}", "s_waitcnt vmcnt(0)", "s_barrier")
        wave0(lambda: arrive(sCnt, 60))
        st.mark(a)
        n_split = st.n
        a(f"s_cmp_ge_u32 s{sWV}, 4", f"s_cbranch_scc1 {NAME}_L")
        a(f"s_setprio {opt('cp_', '3')}")
        a(f"s_load_dwordx2 s[{sIO}:{sIO+1}], s[0:1], 0")
        ACC = 0; WF = 40
        vX, vWA, vN, vG, vR, vT, vRM, vUM, XF = 65, 67, 71, 72, 74, 84, 108, 109, 112
        WF2 = 88
        def rg_setup(which):
            U = 80 if which == 3 else 192
            NS = U // 8
            tile_rg()
            a(f"s_and_b32 s{sTH}, s{sWV}, 1", f"s_bfe_u32 s{sKH}, s{sWV}, 0x10001")
            a(f"v_and_b32 v{vN}, 15, v{vLane}", f"v_lshrrev_b32 v{vG}, 4, v{vLane}")
            a(f"v_lshlrev_b32 v{vT}, 10, v{vG}", f"v_lshl_add_u32 v{vT}, v{vN}, 4, v{vT}", f"s_lshl_b32 s{sT0}, s{sTH}, 9", f"v_add_u32 v{vT}, s{sT0}, v{vT}",
              f"s_lshl_b32 s{sT0}, s{sKH}, 8", f"v_add_u32 v{vX}, s{sT0}, v{vT}", f"s_xor_b32 s{sT0}, s{sT0}, 256", f"v_add_u32 v{vX+1}, s{sT0}, v{vT}")
            a(f"s_mul_i32 s{sXso}, s{sKH}, {NS*4096}")
            a(f"s_mul_i32 s{sT0}, s{sMT}, {U*1024}", f"s_add_u32 s{sT0}, s{sT0}, {O_OFF if which == 3 else H1_OFF}")
            srd(a, SRX, sWS, sWS+1, f"s{sT0}", U*1024)
            a(f"v_mul_u32_u24 v{vRM}, 1280, v{vN}", f"v_lshl_add_u32 v{vRM}, v{vG}, 3, v{vRM}",
              f"v_lshrrev_b32 v{vT}, 1, v{vG}", f"v_lshlrev_b32 v{vT}, 10, v{vT}", f"v_and_b32 v{vT+1}, 1, v{vG}", f"v_lshl_add_u32 v{vT}, v{vT+1}, 3, v{vT}",
              f"v_lshl_add_u32 v{vUM}, v{vN}, 4, v{vT}")
            a(f"s_lshl_b32 s{sT0}, s{sTH}, 5", f"s_lshl_b32 s{sT1}, s{sKH}, 4", f"s_add_u32 s{sT0}, s{sT0}, s{sT1}",
              f"s_lshl_b32 s{sUM}, s{sT0}, 4", f"s_mul_i32 s{sT1}, s{sMT}, 81920", f"s_add_u32 s{sUM}, s{sUM}, s{sT1}", f"s_mul_i32 s{sT1}, s{sNT}, 10240", f"s_add_u32 s{sUM}, s{sUM}, s{sT1}",
              f"s_lshl_b32 s{sT1}, s{sMT}, 6", f"s_add_u32 s{sT2}, s{sT0}, s{sT1}", f"s_mul_i32 s{sRM}, s{sT2}, 1280", f"s_mul_i32 s{sT1}, s{sNT}, 160", f"s_add_u32 s{sRM}, s{sRM}, s{sT1}")
            if which == 3: a(f"s_lshl_b32 s{sSt}, s{sT2}, 3", f"s_lshl_b32 s{sT1}, s{sNT}, 14", f"s_add_u32 s{sSt}, s{sSt}, s{sT1}")
            a(f"v_lshrrev_b32 v{vT}, 1, v{vG}", f"v_lshlrev_b32 v{vT}, 4, v{vT}", f"v_and_b32 v{vT+1}, 1, v{vG}", f"v_lshl_add_u32 v{vT}, v{vT+1}, 2, v{vT}",
              f"v_lshrrev_b32 v{vT+1}, 2, v{vN}", f"v_add_u32 v{vT}, v{vT}, v{vT+1}", f"v_mul_u32_u24 v{vT}, 160, v{vT}",
              f"v_and_b32 v{vT+1}, 3, v{vN}", f"v_lshl_add_u32 v{vT}, v{vT+1}, 3, v{vT}", f"s_mul_i32 s{sT0}, s{sKH}, {51200 if which == 3 else 10240}", f"v_add_u32 v{vWA}, s{sT0}, v{vT}")
            if which == 3: a(f"v_add_u32 v{vWA}, {WO_LDS}, v{vWA}")
            if which == 5: a(f"v_add_u32 v{vWA+1}, 61440, v{vWA}", f"v_add_u32 v{vWA+2}, 122880, v{vWA}")
        def rg_main(which, vq):
            U = 80 if which == 3 else 192
            NS = U // 8; NC = NS // 2
            XR, XD = (10, 10) if which == 3 else (16, int(opt("xd5_", "8")))
            XU = 10 if which == 3 else int(opt("xu5_", "8"))
            nxt = [0]
            lq = Q(a, "lgkmcnt", 15)
            def xreg(s_, tb): return XF + ((s_ % XR) * 2 + tb) * 4
            def issueX(s_):
                a(f"s_add_u32 s{sT1}, s{sXso}, {s_*4096}")
                for tb in range(2):
                    f = xreg(s_, tb)
                    a(f"buffer_load_dwordx4 v[{f}:{f+3}], v{vX+tb}, s[{SRX}:{SRX+3}], s{sT1} offen" + ("" if "xplain" in abl else " sc1")); vq.issue(("x", s_))
            DB = "rgsb" not in abl
            WB = [WF, 240 - 0] if False else [WF, WF2]
            def waddr(s_, cb):
                if which == 3: return vWA, s_*5120 + cb*32
                c, p = s_ // 2, s_ & 1; slot = SLOT5[c]
                return vWA + slot // 3, (slot % 3) * 20480 + p * 5120 + cb * 32
            def wreg(s_): return WB[s_ & 1] if DB else WF
            def rdW1(s_, cb, half):
                base, off = waddr(s_, cb); r = wreg(s_) + 4*cb + 2*half
                a(f"ds_read_b64_tr_b16 v[{r}:{r+1}], v{base} offset:{off + 1280*half}"); lq.issue(("w", s_, cb))
            def rdW(s_, cb): rdW1(s_, cb, 0); rdW1(s_, cb, 1)
            X0 = 4
            for s_ in range(X0): issueX(s_)
            for cb in range(5): rdW(0, cb)
            for s_ in range(X0, min(XU, NS)): issueX(s_)
            nxt[0] = min(XU, NS)
            if which == 3 and "noy0b" not in abl: a("s_barrier")
            for s_ in range(NS):
                c, p = s_ // 2, s_ & 1
                if which == 5 and p == 1 and c + 1 < NC: a("s_barrier")
                if which == 3 and s_ == 5 and "p3mid" in abl: a("s_barrier")
                vq.wait(("x", s_))
                if "fine5" in abl and which == 5 and s_ in ((2, 10) if "e5a" in abl else (14, 22) if "e5b" in abl else (0, 12)): st.mark(a)
                if DB: lq.wait(("w", s_, 4))
                for cb in range(5):
                    if not DB: lq.wait(("w", s_, cb))
                    w = wreg(s_) + 4*cb
                    for tb in range(2):
                        f = xreg(s_, tb); acc = ACC + 20*tb + 4*cb
                        a(f"v_mfma_f32_16x16x32_bf16 v[{acc}:{acc+3}], v[{w}:{w+3}], v[{f}:{f+3}], {'0' if (s_ == 0 and tb == 1) else f'v[{acc}:{acc+3}]'}")
                        if DB and s_ + 1 < NS: rdW1(s_ + 1, cb, tb)
                    if not DB and s_ + 1 < NS: rdW(s_ + 1, cb)
                for _ in range(2):
                    if nxt[0] < NS and nxt[0] <= s_ + XD: issueX(nxt[0]); nxt[0] += 1
            a(f"v_lshlrev_b32 v{vT}, 4, v{vLane}", f"s_mul_i32 s{sT0}, s{sWV}, 5120", f"s_add_u32 s{sT0}, s{sT0}, {SCR}", f"v_add_u32 v{vT+1}, s{sT0}, v{vT}",
              f"s_xor_b32 s{sT1}, s{sWV}, 2", f"s_mul_i32 s{sT1}, s{sT1}, 5120", f"s_add_u32 s{sT1}, s{sT1}, {SCR}", f"v_add_u32 v{vT+2}, s{sT1}, v{vT}", "s_nop 1")
            for cb in range(5): a(f"ds_write_b128 v{vT+1}, v[{ACC+20+4*cb}:{ACC+20+4*cb+3}] offset:{cb*1024}")
            if ("fine" in abl and which == 3) or ("fine5" in abl and which == 5): st.mark(a)
            a("s_waitcnt lgkmcnt(0)", "s_barrier")
            if ("fine" in abl and which == 3) or ("fine5" in abl and which == 5): st.mark(a)
            for cb in range(5): a(f"ds_read_b128 v[{ACC+20+4*cb}:{ACC+20+4*cb+3}], v{vT+2} offset:{cb*1024}")
        rg_setup(3)
        vq = Q(a, "vmcnt", 63)
        a("s_waitcnt lgkmcnt(0)")
        srd(a, SRR, sIO, sIO+1, None, S*D*2)
        srd(a, SRD, sWS, sWS+1, H_OFF, 32*81920)
        srd(a, SRS, sWS, sWS+1, ST_OFF, 8*2048*8)
        for cb in range(5):
            a(f"buffer_load_dwordx2 v[{vR+2*cb}:{vR+2*cb+1}], v{vRM}, s[{SRR}:{SRR+3}], s{sRM} offen offset:{cb*32}"); vq.issue("res")
        def unpack_res(src):
            for cb in range(5):
                r0 = src + 2*cb
                a(f"v_lshlrev_b32 v{ACC+4*cb}, 16, v{r0}", f"v_and_b32 v{ACC+4*cb+1}, 0xffff0000, v{r0}", f"v_lshlrev_b32 v{ACC+4*cb+2}, 16, v{r0+1}", f"v_and_b32 v{ACC+4*cb+3}, 0xffff0000, v{r0+1}")
        a(f"s_lshr_b32 s{sCnt}, s{sMT}, 2", f"s_lshl_b32 s{sCnt}, s{sCnt}, 8", f"s_add_u32 s{sCnt}, s{sCnt}, {CNT_A}")
        wave0(lambda: look(sCnt, 60))
        a("s_waitcnt vmcnt(0)"); vq.flush()
        unpack_res(vR)
        if 'noA' not in abl: wave0(lambda: poll(sCnt, 32, 60, looked=True))
        a("s_barrier")
        st.mark(a)
        rg_main(3, vq)
        S1, S2 = vT + 12, vT + 14
        for cb in range(5):
            a(f"s_waitcnt lgkmcnt({4-cb})")
            hq = vH + 2*cb
            for i in range(0, 4, 2): a(f"v_pk_add_f32 v[{ACC+4*cb+i}:{ACC+4*cb+i+1}], v[{ACC+4*cb+i}:{ACC+4*cb+i+1}], v[{ACC+20+4*cb+i}:{ACC+20+4*cb+i+1}]")
            a(f"v_cvt_pk_bf16_f32 v{hq}, v{ACC+4*cb}, v{ACC+4*cb+1}", f"v_cvt_pk_bf16_f32 v{hq+1}, v{ACC+4*cb+2}, v{ACC+4*cb+3}")
            a(f"s_add_u32 s{sT0}, s{sUM}, {cb*2048}", f"buffer_store_dwordx2 v[{hq}:{hq+1}], v{vUM}, s[{SRD}:{SRD+3}], s{sT0} offen sc1")
        pr = lambda k: f"v[{ACC+2*k}:{ACC+2*k+1}]"
        a(f"v_pk_mul_f32 v[{S2}:{S2+1}], {pr(0)}, {pr(0)}", f"v_pk_add_f32 v[{S1}:{S1+1}], {pr(0)}, {pr(1)}")
        for k in range(1, 10):
            a(f"v_pk_fma_f32 v[{S2}:{S2+1}], {pr(k)}, {pr(k)}, v[{S2}:{S2+1}]")
            if k >= 2: a(f"v_pk_add_f32 v[{S1}:{S1+1}], v[{S1}:{S1+1}], {pr(k)}")
        a(f"v_add_f32 v{S1}, v{S1}, v{S1+1}", f"v_add_f32 v{S2}, v{S2}, v{S2+1}")
        for swap in ("v_permlane32_swap_b32", "v_permlane16_swap_b32"):
            a(f"v_mov_b32 v{S1+1}, v{S1}", f"v_mov_b32 v{S2+1}, v{S2}", "s_nop 1", f"{swap} v{S1}, v{S1+1}", f"{swap} v{S2}, v{S2+1}", "s_nop 1",
              f"v_add_f32 v{S1}, v{S1}, v{S1+1}", f"v_add_f32 v{S2}, v{S2}, v{S2+1}")
        a(f"v_mov_b32 v{S1+1}, v{S2}", f"v_lshlrev_b32 v{vT}, 3, v{vN}", "s_mov_b64 exec, 0xffff",
          f"buffer_store_dwordx2 v[{S1}:{S1+1}], v{vT}, s[{SRS}:{SRS+3}], s{sSt} offen sc1", "s_mov_b64 exec, -1")
        a(f"s_lshr_b32 s{sCnt}, s{sMT}, 1", f"s_lshl_b32 s{sCnt}, s{sCnt}, 8", f"s_add_u32 s{sCnt}, s{sCnt}, {CNT_B}")
        publish(LC_B, 4, 60)
        st.mark(a)
        ACC4, WF4, XF4 = 0, 48, 60
        SEL, CSA, vST, vXo, vWA4, mean, rstd, c1, vN4, vHh, vT4 = 188, 192, 196, 204, 205, 208, 210, 212, 214, 215, 216
        P4B = (7, 14, 20, 27, 34) if "p4b2" not in abl else (14, 27)
        DB4 = "p4db" in abl
        XR4, XD4 = (28 if DB4 else 32), int(opt("xd4_", "14"))
        WB4 = [WF4, 172]
        XU4 = int(opt("xu4_", "12"))
        tile_f1()
        a(f"s_and_b32 s{sW4}, s{sWV}, 3", f"v_and_b32 v{vN4}, 31, v{vLane}", f"v_lshrrev_b32 v{vHh}, 5, v{vLane}")
        a(f"v_lshlrev_b32 v{vXo}, 10, v{vHh}", f"v_lshl_add_u32 v{vXo}, v{vN4}, 4, v{vXo}")
        a(f"s_lshl_b32 s{sT0}, s{sMT}, 1", f"s_lshr_b32 s{sT1}, s{sW4}, 1", f"s_add_u32 s{sT3}, s{sT0}, s{sT1}", f"s_mul_i32 s{sT0}, s{sT3}, 81920", f"s_add_u32 s{sT0}, s{sT0}, {H_OFF}")
        srd(a, SRX, sWS, sWS+1, f"s{sT0}", 81920)
        a(f"s_and_b32 s{sXso}, s{sW4}, 1", f"s_lshl_b32 s{sXso}, s{sXso}, 9", f"s_mul_i32 s{sOo}, s{sT3}, 196608", f"s_add_u32 s{sOo}, s{sOo}, s{sXso}")
        srd(a, SRD, sWS, sWS+1, H1_OFF, 32*196608)
        for sl in range(3):
            a(f"s_add_u32 s{sCB+sl}, s{sW4}, {sl}", f"s_cmp_ge_u32 s{sCB+sl}, 3", f"s_cselect_b32 s{sT0}, 3, 0", f"s_sub_u32 s{sCB+sl}, s{sCB+sl}, s{sT0}",
              f"s_cmp_ge_u32 s{sCB+sl}, 3", f"s_cselect_b32 s{sT0}, 3, 0", f"s_sub_u32 s{sCB+sl}, s{sCB+sl}, s{sT0}")
        a(f"v_bfe_u32 v{vT4}, v{vLane}, 2, 2", f"v_lshl_add_u32 v{vT4}, v{vHh}, 3, v{vT4}", f"v_mul_u32_u24 v{vT4}, 192, v{vT4}",
          f"v_bfe_u32 v{vT4+1}, v{vLane}, 4, 1", f"v_lshl_add_u32 v{vT4}, v{vT4+1}, 5, v{vT4}", f"v_and_b32 v{vT4+1}, 3, v{vLane}", f"v_lshl_add_u32 v{vT4}, v{vT4+1}, 3, v{vT4}")
        for sl in range(3): a(f"s_lshl_b32 s{sT0}, s{sCB+sl}, 6", f"v_add_u32 v{vWA4+sl}, s{sT0}, v{vT4}")
        a(f"v_and_b32 v{vT4}, 15, v{vLane}", f"v_bfe_u32 v{vT4+1}, v{vLane}, 4, 1", f"v_cmp_eq_u32 vcc, v{vT4}, v{vT4+1}", f"v_mov_b32 v{vT4+2}, 0x3f803f80", "s_nop 0",
          f"v_cndmask_b32 v{SEL}, 0, v{vT4+2}, vcc")
        for r in range(1, 4): a(f"v_mov_b32 v{SEL+r}, v{SEL}")
        a(f"s_lshl_b32 s{sT0}, s{sMT}, 7", f"s_lshl_b32 s{sT1}, s{sW4}, 5", f"s_add_u32 s{sT0}, s{sT0}, s{sT1}", f"s_lshl_b32 s{sSt}, s{sT0}, 3",
          f"v_lshlrev_b32 v{vT4+3}, 16, v{vHh}", f"v_lshl_add_u32 v{vT4+3}, v{vN4}, 3, v{vT4+3}")
        a(f"s_lshl_b32 s{sCnt}, s{sMT}, 8", f"s_add_u32 s{sCnt}, s{sCnt}, {CNT_B}")
        if 'noB' not in abl: wave0(lambda: poll(sCnt, 16, vT4+6))
        a("s_barrier")
        st.mark(a)
        if ARR == "lds": a(f"v_mov_b32 v{vT4+10}, {LC_C}", f"v_mov_b32 v{vT4+11}, 0", f"ds_write_b32 v{vT4+10}, v{vT4+11}", "s_waitcnt lgkmcnt(0)")
        vq = Q(a, "vmcnt", 63); lq = Q(a, "lgkmcnt", 15)
        def xr4(t): return XF4 + 4*(t % XR4)
        def issueX4(t):
            a(f"s_add_u32 s{sT1}, s{sXso}, {(t & ~1)*2048}", f"buffer_load_dwordx4 v[{xr4(t)}:{xr4(t)+3}], v{vXo}, s[{SRX}:{SRX+3}], s{sT1} offen offset:{(t & 1)*2048}" + ("" if "xplain" in abl else " sc1"))
            vq.issue(("x", t))
        def w4(t, sl): return (WB4[t & 1] if DB4 else WF4) + 4*sl
        def rdW4h(t, sl, half):
            off = (t % 20) * 3072 + 768*half; r = w4(t, sl) + 2*half
            a(f"ds_read_b64_tr_b16 v[{r}:{r+1}], v{vWA4+sl} offset:{off}"); lq.issue((t, sl))
        def rdW4(t, sl): rdW4h(t, sl, 0); rdW4h(t, sl, 1)
        for t in range(4): issueX4(t)
        for sl in range(3): rdW4(0, sl)
        for q in range(4):
            a(f"buffer_load_dwordx2 v[{vST+2*q}:{vST+2*q+1}], v{vT4+3}, s[{SRS}:{SRS+3}], s{sSt} offen sc1"); vq.issue("st")
            if q < 3: a(f"s_add_u32 s{sSt}, s{sSt}, 16384")
        for t in range(4, XU4): issueX4(t)
        nx4 = [XU4]
        for t in range(40):
            if t in P4B: a("s_barrier")
            if t == 19:
                for sl in range(3): a(f"v_add_u32 v{vWA4+sl}, 61440, v{vWA4+sl}")
            vq.wait(("x", t))
            if DB4: lq.wait((t, 2))
            pend = [(t + 1, sl, h) for sl in range(3) for h in range(2)] if (DB4 and t + 1 < 40) else []
            for sl in range(3):
                if not DB4: lq.wait((t, sl))
                acc = f"v[{ACC4+16*sl}:{ACC4+16*sl+15}]"; wf = f"v[{w4(t, sl)}:{w4(t, sl)+3}]"
                a(f"v_mfma_f32_32x32x16_bf16 {acc}, {wf}, v[{xr4(t)}:{xr4(t)+3}], {'0' if t == 0 else acc}")
                for _ in range(2 if sl else 1):
                    if pend: rdW4h(*pend.pop(0))
                if sl == 0 and not ("nocs4" in abl and t > 0):
                    a(f"v_mfma_f32_16x16x32_bf16 v[{CSA}:{CSA+3}], v[{SEL}:{SEL+3}], {wf}, {'0' if t == 0 else f'v[{CSA}:{CSA+3}]'}")
                    if pend: rdW4h(*pend.pop(0))
                if not DB4 and t + 1 < 40: rdW4(t + 1, sl)
            while pend: rdW4h(*pend.pop(0))
            for _ in range(2):
                if nx4[0] < 40 and nx4[0] <= t + XD4: issueX4(nx4[0]); nx4[0] += 1
        st.mark(a)
        a("s_waitcnt vmcnt(0)")
        a(f"v_add_f32 v{mean}, v{vST}, v{vST+2}", f"v_add_f32 v{rstd}, v{vST+1}, v{vST+3}", f"v_add_f32 v{mean+1}, v{vST+4}, v{vST+6}", f"v_add_f32 v{rstd+1}, v{vST+5}, v{vST+7}",
          f"v_add_f32 v{mean}, v{mean}, v{mean+1}", f"v_add_f32 v{rstd}, v{rstd}, v{rstd+1}", f"v_mov_b32 v{mean+1}, v{mean}", f"v_mov_b32 v{rstd+1}, v{rstd}",
          f"s_lshl_b32 s{sT0}, s{sCB}, 7", f"s_add_u32 s{sT0}, s{sT0}, {SCR}", f"v_lshl_add_u32 v{vT4}, v{vLane}, 2, s{sT0}",
          f"v_permlane32_swap_b32 v{mean}, v{mean+1}", f"v_permlane32_swap_b32 v{rstd}, v{rstd+1}", "s_mov_b64 exec, 0xffff",
          f"ds_write_b32 v{vT4}, v{CSA}", f"ds_write_b32 v{vT4}, v{CSA+1} offset:64", "s_mov_b64 exec, -1",
          f"v_add_f32 v{mean}, v{mean}, v{mean+1}", f"v_add_f32 v{rstd}, v{rstd}, v{rstd+1}")
        a(f"v_mul_f32 v{mean}, {fhex(1.0/640)}, v{mean}", f"v_mul_f32 v{rstd}, {fhex(1.0/640)}, v{rstd}",
          f"v_fma_f32 v{rstd}, -v{mean}, v{mean}, v{rstd}", f"v_max_f32 v{rstd}, 0, v{rstd}", f"v_add_f32 v{rstd}, {fhex(EPS)}, v{rstd}", f"v_rsq_f32 v{rstd}, v{rstd}",
          "s_nop 0", f"v_mul_f32 v{c1}, {fhex(LOG2E)}, v{rstd}")
        a("s_waitcnt lgkmcnt(0)", "s_barrier")
        CS = [60, 76, 92]
        a(f"v_lshlrev_b32 v{vT4}, 4, v{vHh}", f"v_add_u32 v{vT4}, {SCR}, v{vT4}")
        for sl in range(3):
            a(f"s_lshl_b32 s{sT0}, s{sCB+sl}, 7", f"v_add_u32 v{vT4+1}, s{sT0}, v{vT4}")
            for j in range(4): a(f"ds_read_b128 v[{CS[sl]+4*j}:{CS[sl]+4*j+3}], v{vT4+1} offset:{j*32}")
        Z, PK, one = vT4 + 4, vT4 + 8, vT4 + 16
        a(f"v_mov_b32 v{one}, {fhex(LOG2E)}", f"v_mov_b32 v{one+1}, {fhex(LOG2E)}")
        for sl in range(3):
            for jj in range(2):
                for jq in range(2):
                    j = 2*jj + jq
                    a(f"s_waitcnt lgkmcnt({11 - (4*sl + j)})")
                    r = ACC4 + 16*sl + 4*j; cs = CS[sl] + 4*j
                    for h2 in range(2):
                        a(f"v_pk_fma_f32 v[{r+2*h2}:{r+2*h2+1}], v[{mean}:{mean+1}], v[{cs+2*h2}:{cs+2*h2+1}], v[{r+2*h2}:{r+2*h2+1}] op_sel_hi:[0,1,1] neg_lo:[1,0,0] neg_hi:[1,0,0]")
                    for h2 in range(2):
                        a(f"v_pk_mul_f32 v[{r+2*h2}:{r+2*h2+1}], v[{c1}:{c1+1}], v[{r+2*h2}:{r+2*h2+1}] op_sel_hi:[0,1]")
                    for i in range(4): a(f"v_exp_f32 v{Z+i}, -v{r+i}")
                    a("s_nop 0")
                    for h2 in range(2):
                        a(f"v_pk_fma_f32 v[{Z+2*h2}:{Z+2*h2+1}], v[{Z+2*h2}:{Z+2*h2+1}], v[{one}:{one+1}], v[{one}:{one+1}]")
                    for i in range(4): a(f"v_rcp_f32 v{Z+i}, v{Z+i}")
                    a("s_nop 0")
                    for h2 in range(2):
                        a(f"v_pk_mul_f32 v[{r+2*h2}:{r+2*h2+1}], v[{r+2*h2}:{r+2*h2+1}], v[{Z+2*h2}:{Z+2*h2+1}]")
                    p = PK + 4*jj + 2*jq
                    a(f"v_cvt_pk_bf16_f32 v{p}, v{r}, v{r+1}", f"v_cvt_pk_bf16_f32 v{p+1}, v{r+2}, v{r+3}")
                p = PK + 4*jj
                a(f"s_mul_i32 s{sT0}, s{sNT}, 12", f"s_lshl_b32 s{sT1}, s{sCB+sl}, 2", f"s_add_u32 s{sT0}, s{sT0}, s{sT1}", f"s_add_u32 s{sT0}, s{sT0}, {2*jj}",
                  f"s_lshl_b32 s{sT0}, s{sT0}, 10", f"s_add_u32 s{sT0}, s{sT0}, s{sOo}",
                  f"buffer_store_dwordx4 v[{p}:{p+3}], v{vXo}, s[{SRD}:{SRD+3}], s{sT0} offen sc1")
        a(f"s_lshl_b32 s{sCnt}, s{sMT}, 8", f"s_add_u32 s{sCnt}, s{sCnt}, {CNT_C}")
        publish(LC_C, 4, 60)
        st.mark(a)
        a(f"s_load_dwordx2 s[{sIO}:{sIO+1}], s[0:1], 48")
        rg_setup(5)
        a("s_waitcnt lgkmcnt(0)")
        srd(a, SRR, sIO, sIO+1, None, S*D*2)
        unpack_res(vH)
        a(f"s_lshr_b32 s{sCnt}, s{sMT}, 1", f"s_lshl_b32 s{sCnt}, s{sCnt}, 8", f"s_add_u32 s{sCnt}, s{sCnt}, {CNT_C}")
        if 'noC' not in abl: wave0(lambda: poll(sCnt, 16, 60))
        a("s_barrier")
        st.mark(a)
        vq = Q(a, "vmcnt", 63)
        rg_main(5, vq)
        vW16 = vT + 3
        OUTF = " sc1" if "outsc1" in abl else " nt" if "outnt" in abl else ""
        a(f"v_and_b32 v{vW16}, 1, v{vG}", f"v_lshlrev_b32 v{vW16}, 5, v{vW16}", f"v_lshrrev_b32 v{vT+4}, 1, v{vG}", f"v_lshl_add_u32 v{vW16}, v{vT+4}, 4, v{vW16}",
          f"v_mul_u32_u24 v{vT+4}, 1280, v{vN}", f"v_add_u32 v{vW16}, v{vW16}, v{vT+4}")
        for cb in range(5):
            a(f"s_waitcnt lgkmcnt({4-cb})")
            r0 = vR + 2*cb
            for i in range(0, 4, 2): a(f"v_pk_add_f32 v[{ACC+4*cb+i}:{ACC+4*cb+i+1}], v[{ACC+4*cb+i}:{ACC+4*cb+i+1}], v[{ACC+20+4*cb+i}:{ACC+20+4*cb+i+1}]")
            a(f"v_cvt_pk_bf16_f32 v{r0}, v{ACC+4*cb}, v{ACC+4*cb+1}", f"v_cvt_pk_bf16_f32 v{r0+1}, v{ACC+4*cb+2}, v{ACC+4*cb+3}")
            if cb in (1, 3):
                q = r0 - 2
                a("s_nop 1", f"v_permlane16_swap_b32 v{q}, v{q+2}", f"v_permlane16_swap_b32 v{q+1}, v{q+3}",
                  f"buffer_store_dwordx4 v[{q}:{q+3}], v{vW16}, s[{SRR}:{SRR+3}], s{sRM} offen offset:{(cb-1)*32}" + OUTF)
            if cb == 4:
                a(f"buffer_store_dwordx2 v[{r0}:{r0+1}], v{vRM}, s[{SRR}:{SRR+3}], s{sRM} offen offset:{cb*32}" + OUTF)
        st.flush(a, sWV, vT)
        a("s_endpgm")
        st.n = n_split
        a.label(f"{NAME}_L")
        a(f"s_setprio {opt('lp_', '0')}")
        a(f"v_lshlrev_b32 v1, 4, v{vLane}", f"s_and_b32 s{sW4}, s{sWV}, 3")
        u = f"{NAME}_rpoll"
        a(f"s_mov_b32 s{sSpin}, {SPIN_MAX}")
        a.label(u)
        a(f"v_cmp_gt_u32 vcc, 16, v3", f"s_cbranch_vccz {u}_d", f"global_load_dword v3, v2, {ws} sc1", "s_waitcnt vmcnt(0)",
          f"s_sub_u32 s{sSpin}, s{sSpin}, 1", f"s_cmp_lg_u32 s{sSpin}, 0", f"s_cbranch_scc1 {u}")
        a.label(f"{u}_d")
        def linear(woff, wtile, npw, ldsbase=0, p0=0):
            a(f"s_mul_i32 s{sT0}, s{sNT}, {wtile}", f"s_add_u32 s{sT0}, s{sT0}, {woff}")
            srd(a, SRW, sWS, sWS+1, f"s{sT0}", wtile)
            a(f"s_mul_i32 s{sLW}, s{sW4}, {npw*1024}")
            if p0: a(f"s_add_u32 s{sLW}, s{sLW}, {p0*1024}")
            for g0 in range(0, npw, 4):
                a(f"s_add_u32 m0, s{sLW}, {ldsbase + g0*1024}", f"s_add_u32 s{sT0}, s{sLW}, {g0*1024}")
                for r in range(min(4, npw - g0)): a(f"buffer_load_dwordx4 v1, s[{SRW}:{SRW+3}], s{sT0} offen offset:{r*1024} sc1 lds")
                if THR and g0 + 4 < npw: a(f"s_waitcnt vmcnt({THR})")
        def pieces(woff, wtile, lst):
            assert len(lst) % 4 == 0
            n = len(lst) // 4
            runs = [lst[d*n:(d+1)*n] for d in range(4)]
            a(f"s_mul_i32 s{sT0}, s{sNT}, {wtile}", f"s_add_u32 s{sT0}, s{sT0}, {woff}")
            srd(a, SRW, sWS, sWS+1, f"s{sT0}", wtile)
            for i in range(n):
                vals = [runs[d][i] * 1024 for d in range(4)]
                if all(vals[d] - vals[0] == d * (vals[1] - vals[0]) for d in range(4)):
                    a(f"s_mul_i32 s{sLW}, s{sW4}, {vals[1] - vals[0]}", f"s_add_u32 s{sLW}, s{sLW}, {vals[0]}")
                else:
                    a(f"s_mov_b32 s{sLW}, {vals[0]}")
                    for d in range(1, 4): a(f"s_cmp_eq_u32 s{sW4}, {d}", f"s_cselect_b32 s{sLW}, {vals[d]}, s{sLW}")
                a(f"s_mov_b32 m0, s{sLW}", "s_nop 0", f"buffer_load_dwordx4 v1, s[{SRW}:{SRW+3}], s{sLW} offen sc1 lds")
        tile_rg()
        if "nowo" not in abl: linear(WO_OFF, 102400, 25, WO_LDS)
        a("s_waitcnt vmcnt(0)", "s_barrier")
        st.mark(a)
        if "noy0b" not in abl: a("s_barrier")
        tile_f1(); linear(W1_OFF, 122880, 10)
        if "p3mid" in abl:
            a("s_barrier")
            l1 = list(range(40, 65)) + list(range(90, 115)) + [65, 66]
            l1 = list(range(40, 64)) + list(range(90, 114))
            pieces(W1_OFF, 122880, l1)
        a("s_barrier")
        if WSTART == "split" and "p3mid" in abl:
            a("s_barrier")
            pieces(W1_OFF, 122880, list(range(64, 90)) + list(range(114, 120)))
            a("s_barrier")
        elif WSTART == "split":
            a("s_barrier")
            if "now1b" not in abl: linear(W1_OFF, 122880, 10, p0=40)
            a("s_barrier")
            if "now1b" not in abl: linear(W1_OFF, 122880, 10, p0=80)
        else:
            loader_gate()
            linear(W1_OFF, 122880, 20, p0=40)
            loader_post()
        st.mark(a)
        a("s_waitcnt vmcnt(0)", "s_barrier")
        st.mark(a); st.mark(a)
        tile_rg()
        a(f"s_mul_i32 s{sT0}, s{sNT}, 245760", f"s_add_u32 s{sT0}, s{sT0}, {W2_OFF}")
        srd(a, SRW, sWS, sWS+1, f"s{sT0}", 245760)
        a(f"s_and_b32 s{sTH}, s{sWV}, 1", f"s_bfe_u32 s{sKH}, s{sWV}, 0x10001")
        a(f"s_mul_i32 s{sWso}, s{sKH}, 24", f"s_add_u32 s{sWso}, s{sWso}, s{sTH}", f"s_mul_i32 s{sWso}, s{sWso}, 5120",
          f"s_mul_i32 s{sLW}, s{sKH}, 10240", f"s_mul_i32 s{sT0}, s{sTH}, 5120", f"s_add_u32 s{sLW}, s{sLW}, s{sT0}")
        vq = Q(a, "vmcnt", 63)
        def issue5(c):
            slot = SLOT5[c]
            a(f"s_add_u32 m0, s{sLW}, {slot*20480}", f"s_add_u32 s{sT0}, s{sWso}, {c*10240}")
            for r in range(4):
                a(f"buffer_load_dwordx4 v1, s[{SRW}:{SRW+3}], s{sT0} offen offset:{r*1024} sc1 lds"); vq.issue(("c", c))
            a(f"s_add_u32 m0, s{sLW}, {slot*20480 + 4096}", f"s_add_u32 s{sT0}, s{sWso}, {c*10240 + 4096}",
              f"buffer_load_dwordx4 v1, s[{SRW}:{SRW+3}], s{sT0} offen sc1 lds"); vq.issue(("c", c))
        issue5(0)
        if "p4b2" in abl:
            a("s_barrier"); issue5(1); issue5(2)
            a("s_barrier"); issue5(3); issue5(4)
            last = [5, 6]
        else:
            for c in range(1, 6): a("s_barrier"); issue5(c)
            last = [6]
        a("s_barrier")
        if WSTART == "split":
            a("s_barrier")
            if len(last) == 2: issue5(last[0])
            a("s_barrier"); issue5(last[-1]); issue5(7)
        else:
            loader_gate()
            for c in last: issue5(c)
            loader_post()
        st.mark(a)
        for k in range(12):
            vq.wait(("c", k)); a("s_barrier")
            if k == 0: st.mark(a)
            WL = int(opt("wl_", "3"))
            if k + WL >= 8 and k + WL < 12: issue5(k + WL)
        a("s_barrier")
        st.flush(a, sWV, 8)
    return fused
```

```python
from gen_common import *
NAME = "k1_qkv_kernel"
NSLOT = 5
def gen(prefetch_code=None, stamp=None, abl=(), single=None):
    global NAME
    NAME = single if single else "k1_qkv_kernel"
    a = Asm(); st = (MinStamps(stamp) if 'min' in abl else WideStamps(stamp) if single else Stamps(stamp))
    if single and stamp is not None and 'min' not in abl: st.mark = (lambda f: (lambda a_, keep=False: f(a_) if keep else None))(st.mark)
    kernel_header(a, NAME)
    if single and stamp is not None and 'min' not in abl: st.mark(a, True)
    else: st.mark(a)
    sX, sW, sWS = 4, 6, 8
    SRX, SRW, SRO = 12, 16, 20
    sMT, sNT, sNTS, sSEC, sWV, sW4 = 24, 25, 26, 27, 28, 29
    sT0, sT1, sT2, sT3 = 30, 31, 32, 33
    sXso, sWso, sLX, sLW = 34, 35, 36, 37
    sMask, sBlkOff = 38, 39
    vLane, vN, vHh = 112, 113, 114
    vT = 116
    NV = 168
    SCR_CS, SCR_ST = 0, 1024
    a(f"s_cmp_ge_u32 s2, 256", f"s_cbranch_scc1 {NAME}_end")
    a(f"s_load_dwordx4 s[4:7], s[0:1], 0", f"s_load_dwordx2 s[8:9], s[0:1], 64")
    MAP24 = "map42" not in abl
    MAP18 = "map18" in abl
    ZWG = 135 if MAP18 else 195 if MAP24 else 225
    if MAP18:
        a(f"s_and_b32 s{sT0}, s2, 7", f"s_lshr_b32 s{sT1}, s2, 3", f"s_and_b32 s{sMT}, s{sT1}, 15",
          f"s_lshl_b32 s{sNT}, s{sT0}, 1", f"s_lshr_b32 s{sT2}, s{sT1}, 4", f"s_add_u32 s{sNT}, s{sNT}, s{sT2}",
          f"s_cmp_ge_u32 s{sNT}, 15", f"s_cbranch_scc1 {NAME}_idle")
    elif MAP24:
        a(f"s_and_b32 s{sT0}, s2, 7", f"s_lshr_b32 s{sT1}, s2, 3",
          f"s_lshr_b32 s{sMT}, s{sT0}, 2", f"s_lshl_b32 s{sMT}, s{sMT}, 3", f"s_and_b32 s{sT2}, s{sT1}, 7", f"s_add_u32 s{sMT}, s{sMT}, s{sT2}",
          f"s_and_b32 s{sNT}, s{sT0}, 3", f"s_lshl_b32 s{sNT}, s{sNT}, 2", f"s_lshr_b32 s{sT2}, s{sT1}, 3", f"s_add_u32 s{sNT}, s{sNT}, s{sT2}",
          f"s_cmp_ge_u32 s{sNT}, 15", f"s_cbranch_scc1 {NAME}_idle")
    else:
        a(f"s_and_b32 s{sT0}, s2, 7", f"s_lshr_b32 s{sT1}, s2, 3",
          f"s_lshr_b32 s{sMT}, s{sT0}, 1", f"s_lshl_b32 s{sMT}, s{sMT}, 2", f"s_and_b32 s{sT2}, s{sT1}, 3", f"s_add_u32 s{sMT}, s{sMT}, s{sT2}",
          f"s_and_b32 s{sNT}, s{sT0}, 1", f"s_lshl_b32 s{sNT}, s{sNT}, 3", f"s_lshr_b32 s{sT2}, s{sT1}, 2", f"s_add_u32 s{sNT}, s{sNT}, s{sT2}",
          f"s_cmp_ge_u32 s{sNT}, 15", f"s_cbranch_scc1 {NAME}_idle")
    a(f"v_lshrrev_b32 v{vT}, 6, v0", f"v_and_b32 v{vLane}, 63, v0")
    a(f"s_mul_i32 s{sSEC}, s{sNT}, 205", f"s_lshr_b32 s{sSEC}, s{sSEC}, 10")
    a(f"v_readfirstlane_b32 s{sWV}, v{vT}")
    a(f"s_mul_i32 s{sT2}, s{sSEC}, 5", f"s_sub_u32 s{sNTS}, s{sNT}, s{sT2}")
    a(f"v_and_b32 v{vN}, 31, v{vLane}", f"v_lshrrev_b32 v{vHh}, 5, v{vLane}")
    a(f"s_and_b32 s{sW4}, s{sWV}, 3", f"s_cmp_ge_u32 s{sWV}, 4", f"s_cbranch_scc0 {NAME}_M")
    L, N_, Hh = vLane, vN, vHh
    def x_read_addr(dst):
        a(f"v_lshlrev_b32 v{vT}, 7, v{N_}", f"s_lshl_b32 s{sT0}, s{sW4}, 12", f"v_add_u32 v{vT}, s{sT0}, v{vT}", f"v_bfe_u32 v{vT+1}, v{N_}, 1, 3")
        for t in range(4):
            a(f"v_add_u32 v{vT+2}, {2*t}, v{Hh}", f"v_xor_b32 v{vT+2}, v{vT+2}, v{vT+1}", f"v_lshl_add_u32 v{dst+t}, v{vT+2}, 4, v{vT}")
    def w_read_addr(dst, nsl):
        a(f"v_bfe_u32 v{vT}, v{L}, 2, 2", f"v_lshl_add_u32 v{vT+1}, v{Hh}, 3, v{vT}", f"v_lshlrev_b32 v{vT+1}, 8, v{vT+1}",
          f"v_bfe_u32 v{vT+2}, v{L}, 4, 1", f"v_lshlrev_b32 v{vT+2}, 1, v{vT+2}", f"v_bfe_u32 v{vT+3}, v{L}, 1, 1", f"v_add_u32 v{vT+2}, v{vT+2}, v{vT+3}",
          f"v_lshl_add_u32 v{vT+1}, v{vT+2}, 4, v{vT+1}", f"v_and_b32 v{vT+3}, 1, v{L}", f"v_lshl_add_u32 v{vT+1}, v{vT+3}, 3, v{vT+1}", f"v_add_u32 v{vT+1}, 16384, v{vT+1}")
        for sl in range(nsl):
            a(f"s_add_u32 s{sT0}, s{sW4}, {sl}", f"s_and_b32 s{sT0}, s{sT0}, 3", f"v_xor_b32 v{vT+2}, s{sT0}, v{vT}", f"v_lshl_add_u32 v{dst+sl}, v{vT+2}, 6, v{vT+1}")
    def slot_delta(c):
        s0, s1 = c % NSLOT, (c + 1) % NSLOT
        return ((s1 // 2) - (s0 // 2)) * 65536
    def slot_imm(c): return ((c % NSLOT) & 1) * 32768
    vXe, vXo, vWv = 0, 1, 2
    LXA, LWA = 4, 8
    LXF, LWF = 12, 20
    LT = 28
    S1, S2, CS = 32, 34, 36
    a(f"v_lshrrev_b32 v{vT}, 3, v{L}", f"v_mul_u32_u24 v{vT}, 1280, v{vT}", f"v_lshrrev_b32 v{vT+1}, 4, v{L}",
      f"v_and_b32 v{vT+2}, 7, v{L}", f"v_xor_b32 v{vT+2}, v{vT+2}, v{vT+1}", f"v_lshl_add_u32 v{vXe}, v{vT+2}, 4, v{vT}", f"v_xor_b32 v{vXo}, 64, v{vXe}",
      f"v_mul_u32_u24 v{vT}, 3840, v{vT+1}", f"v_lshlrev_b32 v{vT+2}, 2, v{vT+1}", f"v_and_b32 v{vT+3}, 15, v{L}", f"v_xor_b32 v{vT+2}, v{vT+2}, v{vT+3}",
      f"v_lshl_add_u32 v{vWv}, v{vT+2}, 4, v{vT}")
    if "noprio" not in abl: a("s_setprio 3")
    a(f"s_mul_i32 s{sXso}, s{sW4}, 40960", f"s_lshl_b32 s{sLX}, s{sW4}, 12", f"s_mul_i32 s{sWso}, s{sW4}, {16*3840}", f"s_add_u32 s{sLW}, s{sLX}, 16384")
    a("s_waitcnt lgkmcnt(0)")
    a(f"s_mul_i32 s{sT0}, s{sMT}, 163840")
    srd(a, SRX, sX, sX+1, f"s{sT0}", 163840)
    a(f"s_lshl_b32 s{sT0}, s{sNT}, 8", f"s_sub_u32 s{sT1}, {640*3840}, s{sT0}")
    srd(a, SRW, sW, sW+1, f"s{sT0}", f"s{sT1}")
    vq = Q(a, "vmcnt", 63); lq = Q(a, "lgkmcnt", 15)
    sKC, sXc, sWc = 40, 41, 42
    rot = [x for x in abl if x.startswith("rot_")]
    if "norot" in abl: a(f"s_mov_b32 s{sKC}, 0")
    elif MAP18:
        tbl = [x[4:] for x in abl if x.startswith("r18_")]
        t8 = tbl[0] if tbl else "01245679"
        packed = sum(int(ch) << (4*i) for i, ch in enumerate(t8))
        a(f"s_lshr_b32 s{sKC}, s{sNT}, 1", f"s_lshl_b32 s{sKC}, s{sKC}, 2", f"s_lshr_b32 s{sKC}, {packed}, s{sKC}", f"s_and_b32 s{sKC}, s{sKC}, 15")
    elif MAP24:
        tbl = [x[4:] for x in abl if x.startswith("r24_")]
        t4 = tbl[0] if tbl else "0257"
        packed = sum(int(ch) << (4*i) for i, ch in enumerate(t4))
        a(f"s_lshr_b32 s{sKC}, s{sNT}, 2", f"s_lshl_b32 s{sKC}, s{sKC}, 2", f"s_lshr_b32 s{sKC}, {packed}, s{sKC}", f"s_and_b32 s{sKC}, s{sKC}, 15",
          f"s_lshr_b32 s{sT0}, s{sMT}, 3", f"s_mul_i32 s{sT0}, s{sT0}, 5", f"s_add_u32 s{sKC}, s{sKC}, s{sT0}",
          f"s_cmp_ge_u32 s{sKC}, 10", f"s_cselect_b32 s{sT0}, 10, 0", f"s_sub_u32 s{sKC}, s{sKC}, s{sT0}")
    elif rot:
        _, tbl, e = rot[0].split("_")
        packed = sum(int(ch) << (4*i) for i, ch in enumerate(tbl))
        a(f"s_lshr_b32 s{sKC}, s{sMT}, 2", f"s_lshl_b32 s{sKC}, s{sKC}, 2", f"s_lshr_b32 s{sKC}, {packed}, s{sKC}", f"s_and_b32 s{sKC}, s{sKC}, 15",
          f"s_lshr_b32 s{sT0}, s{sNT}, 3", f"s_mul_i32 s{sT0}, s{sT0}, {e}", f"s_add_u32 s{sKC}, s{sKC}, s{sT0}",
          f"s_cmp_ge_u32 s{sKC}, 10", f"s_cselect_b32 s{sT0}, 10, 0", f"s_sub_u32 s{sKC}, s{sKC}, s{sT0}")
    else:
        a(f"s_lshr_b32 s{sKC}, s{sMT}, 2", f"s_lshl_b32 s{sKC}, s{sKC}, 1", f"s_lshr_b32 s{sT0}, s{sNT}, 3", f"s_mul_i32 s{sT0}, s{sT0}, 5", f"s_add_u32 s{sKC}, s{sKC}, s{sT0}",
          f"s_cmp_ge_u32 s{sKC}, 10", f"s_cselect_b32 s{sT0}, 10, 0", f"s_sub_u32 s{sKC}, s{sKC}, s{sT0}")
    def next_chunk():
        a(f"s_lshl_b32 s{sXc}, s{sKC}, 7", f"s_add_u32 s{sXc}, s{sXc}, s{sXso}", f"s_mul_i32 s{sWc}, s{sKC}, {64*3840}", f"s_add_u32 s{sWc}, s{sWc}, s{sWso}",
          f"s_add_u32 s{sKC}, s{sKC}, 1", f"s_cmp_ge_u32 s{sKC}, 10", f"s_cselect_b32 s{sKC}, 0, s{sKC}")
    def dma_piece(c, j):
        slot = c % NSLOT
        if j < 4:
            a(f"s_add_u32 m0, s{sLX}, {slot*32768 + j*1024}", f"s_add_u32 s{sT0}, s{sXc}, {j*10240}",
              f"buffer_load_dwordx4 v{vXo if j&1 else vXe}, s[{SRX}:{SRX+3}], s{sT0} offen lds")
        else:
            j -= 4
            a(f"s_add_u32 m0, s{sLW}, {slot*32768 + j*1024}", f"s_add_u32 s{sT0}, s{sWc}, {j*4*3840}",
              f"buffer_load_dwordx4 v{vWv}, s[{SRW}:{SRW+3}], s{sT0} offen lds")
        vq.issue(("c", c))
    order = [0, 4, 1, 5, 2, 6, 3, 7]
    def issue(c):
        next_chunk()
        for j in order: dma_piece(c, j)
    issue(0); issue(1)
    if 'k1d3' in abl: issue(2)
    if "touch" in abl:
        a(f"s_lshr_b32 s{sT3}, s2, 3", f"s_lshl_b32 s{sT3}, s{sT3}, 2", f"s_add_u32 s{sT3}, s{sT3}, s{sW4}")
        a(f"s_mul_i32 s{sT2}, s{sT3}, 28", f"v_add_u32 v{vT}, s{sT2}, v{L}", f"v_mul_u32_u24 v{vT+1}, 9363, v{vT}", f"v_lshrrev_b32 v{vT+1}, 16, v{vT+1}",
          f"v_mul_u32_u24 v{vT+2}, 7, v{vT+1}", f"v_sub_u32 v{vT+2}, v{vT}, v{vT+2}", f"v_mul_u32_u24 v{vT+1}, 1280, v{vT+1}", f"v_lshl_add_u32 v{vT+1}, v{vT+2}, 7, v{vT+1}",
          f"s_lshr_b32 s{sT2}, s{sMT}, 2", f"s_mul_i32 s{sT2}, s{sT2}, {512*1280}", f"s_add_u32 s{sT2}, s{sT2}, 384")
        srd(a, 48, sX, sX+1, None, S*D*2)
        a("s_mov_b32 exec_lo, 0x0fffffff", "s_mov_b32 exec_hi, 0", f"buffer_load_dword v{vT+14}, v{vT+1}, s[48:51], s{sT2} offen", "s_mov_b64 exec, -1")
        vq.issue("touch")
        a(f"s_mul_i32 s{sT2}, s{sT3}, 56", f"v_add_u32 v{vT}, s{sT2}, v{L}", f"v_lshrrev_b32 v{vT+1}, 4, v{vT}", f"v_and_b32 v{vT+2}, 15, v{vT}",
          f"v_mul_u32_u24 v{vT+1}, 3840, v{vT+1}", f"v_lshl_add_u32 v{vT+1}, v{vT+2}, 7, v{vT+1}",
          f"s_lshr_b32 s{sT2}, s{sNT}, 3", f"s_lshl_b32 s{sT2}, s{sT2}, 11", f"s_add_u32 s{sT2}, s{sT2}, {192*3840}")
        srd(a, 52, sW, sW+1, None, 640*3840)
        a("s_mov_b32 exec_hi, 0x00ffffff", f"buffer_load_dword v{vT+15}, v{vT+1}, s[52:55], s{sT2} offen", "s_mov_b64 exec, -1")
        vq.issue("touch")
    if prefetch_code:
        a(f"s_lshr_b32 s{sT3}, s2, 3", f"s_cmp_ge_u32 s{sT3}, {prefetch_code}", f"s_cbranch_scc1 {NAME}_nocpf", f"s_cmp_lg_u32 s{sWV}, 7", f"s_cbranch_scc1 {NAME}_nocpf")
        emit_code_prefetch(a, "all_code_begin", "all_code_end", sT3, vLane, vT+12, 44)
        a.label(f"{NAME}_nocpf")
    st.mark(a)
    vq.wait(("c", 0)); a("s_barrier")
    st.mark(a)
    if 'k1d3' not in abl: issue(2)
    issue(3)
    sDBG, sFl = 46, 48
    a(f"s_load_dwordx2 s[{sDBG}:{sDBG+1}], s[0:1], 56")
    srd(a, SRO, sWS, sWS+1, ST1_OFF, 2048*8)
    a(f"s_lshl_b32 s{sFl}, s{sMT}, 2", f"v_mov_b32 v8, s{sFl}", f"v_lshlrev_b32 v9, 4, v{L}", "v_mov_b32 v10, 0", f"s_lshl_b32 s{sFl}, s{sMT}, 10", "s_waitcnt lgkmcnt(0)")
    if single:
        a(f"v_cmp_eq_u32 vcc, 0, v{L}", "v_mov_b32 v11, 64", "s_nop 0", "v_cndmask_b32 v8, v11, v8, vcc")
    def d0(fn, tag):
        a(f"s_cmp_lg_u32 s{sWV}, 4", f"s_cbranch_scc1 {NAME}_d0{tag}"); fn(); a.label(f"{NAME}_d0{tag}")
    def flag_look(): a(f"global_load_dword v10, v8, s[{sDBG}:{sDBG+1}]")
    def flag_check():
        a("s_waitcnt vmcnt(0)", f"s_mov_b32 s{sT1}, {1 << 18}")
        a.label(f"{NAME}_fp")
        a("v_cmp_eq_u32 vcc, 0, v10", f"s_cbranch_vccz {NAME}_fp_d", f"global_load_dword v10, v8, s[{sDBG}:{sDBG+1}] sc1", "s_waitcnt vmcnt(0)",
          f"s_sub_u32 s{sT1}, s{sT1}, 1", f"s_cmp_lg_u32 s{sT1}, 0", f"s_cbranch_scc1 {NAME}_fp")
        a.label(f"{NAME}_fp_d")
        a(f"buffer_load_dwordx4 v[12:15], v9, s[{SRO}:{SRO+3}], s{sFl} offen sc1")
    for k in range(1, 10):
        if k == 9 and "noflag" not in abl:
            a(f"s_cmp_eq_u32 s{sWV}, 4", f"s_cbranch_scc1 {NAME}_nw9"); vq.wait(("c", k)); a.label(f"{NAME}_nw9")
        else: vq.wait(("c", k))
        a("s_barrier")
        nx = k + 3
        if nx < 10: issue(nx)
        if k == 7 and "noflag" not in abl: d0(flag_look, "a")
        if k == 8 and "noflag" not in abl: d0(flag_check, "b")
    d0(lambda: a("s_waitcnt vmcnt(0)", f"ds_write_b128 v9, v[12:15] offset:{SCR_ST}", "s_waitcnt lgkmcnt(0)"), "c")
    st.mark(a)
    a("s_barrier")
    if single: a(f"s_branch {NAME}_p1d")
    else:
        st.flush(a, sWV, vT)
        a("s_endpgm")
    st.n = 1
    a.label(f"{NAME}_M")
    if "noprio" not in abl: a("s_setprio 2")
    ACC, WF, XF, vXA, vWA, vST = 0, 64, 80, 88, 92, 96
    vCSR = 132
    x_read_addr(vXA); w_read_addr(vWA, 4)
    SEL, CSA = 164, 160
    a(f"v_and_b32 v{vT}, 15, v{L}", f"v_bfe_u32 v{vT+1}, v{L}, 4, 1", f"v_cmp_eq_u32 vcc, v{vT}, v{vT+1}", f"v_mov_b32 v{vT+2}, 0x3f803f80", "s_nop 0",
      f"v_cndmask_b32 v{SEL}, 0, v{vT+2}, vcc")
    for r in range(1, 4): a(f"v_mov_b32 v{SEL+r}, v{SEL}")
    a(f"s_cmp_eq_u32 s{sSEC}, 2", f"s_cbranch_scc1 {NAME}_addr_v")
    a(f"s_cmp_eq_u32 s{sSEC}, 0")
    csel(a, f"s{sBlkOff}", Q_OFF, KU_OFF)
    a(f"s_lshl_b32 s{sT0}, s{sMT}, 2", f"s_add_u32 s{sT0}, s{sT0}, s{sW4}", f"s_mul_i32 s{sT0}, s{sT0}, 40960", f"s_add_u32 s{sBlkOff}, s{sBlkOff}, s{sT0}",
      f"s_lshl_b32 s{sT0}, s{sNTS}, 13", f"s_add_u32 s{sBlkOff}, s{sBlkOff}, s{sT0}", f"v_lshlrev_b32 v{vST}, 4, v{L}")
    def m_main(isv):
        lq = Q(a, "lgkmcnt", 15)
        def rdX(c, t):
            b = XF + 4*((4*c + t) & 1)
            a(f"ds_read_b128 v[{b}:{b+3}], v{vXA+t} offset:{slot_imm(c)}"); lq.issue(("x", c, t))
        def rdW(c, t, sl):
            a(f"ds_read_b64_tr_b16 v[{WF+4*sl}:{WF+4*sl+1}], v{vWA+sl} offset:{slot_imm(c) + t*4096}",
              f"ds_read_b64_tr_b16 v[{WF+4*sl+2}:{WF+4*sl+3}], v{vWA+sl} offset:{slot_imm(c) + t*4096 + 1024}")
            lq.issue(("w", c, t, sl)); lq.issue(("w", c, t, sl))
        st.mark(a)
        a("s_barrier")
        st.mark(a)
        rdX(0, 0)
        for sl in range(4): rdW(0, 0, sl)
        for c in range(10):
            for t in range(4):
                cn, tn = (c, t + 1) if t < 3 else (c + 1, 0)
                d = slot_delta(c) if (t == 3 and cn < 10) else 0
                if t == 3 and cn < 10:
                    a("s_barrier")
                    if d: a(f"v_add_u32 v{vXA}, {d & 0xffffffff}, v{vXA}")
                if cn < 10: rdX(cn, tn)
                xb = XF + 4*((4*c + t) & 1)
                xf = f"v[{xb}:{xb+3}]"
                for sl in range(4):
                    lq.wait(("w", c, t, sl), ("x", c, t))
                    wf = f"v[{WF+4*sl}:{WF+4*sl+3}]"
                    acc = f"v[{ACC+16*sl}:{ACC+16*sl+15}]"
                    cin = "0" if (c == 0 and t == 0) else acc
                    if "nomfma" in abl: pass
                    elif isv: a(f"v_mfma_f32_32x32x16_bf16 {acc}, {xf}, {wf}, {cin}")
                    else: a(f"v_mfma_f32_32x32x16_bf16 {acc}, {wf}, {xf}, {cin}")
                    if sl == 0 and not ("nocs" in abl and c + t > 0):
                        a(f"v_mfma_f32_16x16x32_bf16 v[{CSA}:{CSA+3}], v[{SEL}:{SEL+3}], {wf}, {'0' if (c == 0 and t == 0) else f'v[{CSA}:{CSA+3}]'}")
                    if d:
                        a(f"v_add_u32 v{vWA+sl}, {d & 0xffffffff}, v{vWA+sl}")
                        if sl < 3: a(f"v_add_u32 v{vXA+1+sl}, {d & 0xffffffff}, v{vXA+1+sl}")
                    if cn < 10: rdW(cn, tn, sl)
        st.mark(a)
        a(f"s_lshl_b32 s{sT0}, s{sW4}, 7", f"v_lshl_add_u32 v{vT}, v{L}, 2, s{sT0}", "s_nop 7", "s_mov_b64 exec, 0xffff",
          f"ds_write_b32 v{vT}, v{CSA} offset:{SCR_CS}", f"ds_write_b32 v{vT}, v{CSA+1} offset:{SCR_CS+64}", "s_mov_b64 exec, -1", "s_waitcnt lgkmcnt(0)")
        a("s_barrier")
    m_main(False)
    mean = vT + 10
    a(f"s_lshl_b32 s{sT0}, s{sW4}, 8", f"v_lshl_add_u32 v{vT}, v{N_}, 3, s{sT0}", f"ds_read_b64 v[{mean}:{mean+1}], v{vT} offset:{SCR_ST}")
    a(f"v_lshlrev_b32 v{vT}, 4, v{Hh}")
    for sl in range(4):
        a(f"s_add_u32 s{sT0}, s{sW4}, {sl}", f"s_and_b32 s{sT0}, s{sT0}, 3", f"s_lshl_b32 s{sT0}, s{sT0}, 7", f"v_add_u32 v{vT+1}, s{sT0}, v{vT}")
        if sl < 2:
            for j in range(4): a(f"ds_read_b128 v[{vCSR+16*sl+4*j}:{vCSR+16*sl+4*j+3}], v{vT+1} offset:{SCR_CS + j*32}")
        else:
            a(f"v_mov_b32 v{vT+sl}, v{vT+1}")
    rs = vT + 12
    a(f"s_cmp_eq_u32 s{sSEC}, 0", f"s_cselect_b32 s{sT0}, {fhex(QSCALE)}, 1.0", "s_waitcnt lgkmcnt(8)", f"v_mul_f32 v{rs}, s{sT0}, v{mean+1}")
    for sl in range(4):
        cs0 = vCSR + 16*(sl & 1)
        for j in range(4):
            if sl < 2: a(f"s_waitcnt lgkmcnt({7 - 4*sl - j})")
            elif j == 0: a("s_waitcnt lgkmcnt(0)" if sl == 3 else "s_waitcnt lgkmcnt(4)")
            r = ACC + 16*sl + 4*j
            for h2 in range(2):
                a(f"v_pk_fma_f32 v[{r+2*h2}:{r+2*h2+1}], v[{mean}:{mean+1}], v[{cs0+4*j+2*h2}:{cs0+4*j+2*h2+1}], v[{r+2*h2}:{r+2*h2+1}] op_sel_hi:[0,1,1] neg_lo:[1,0,0] neg_hi:[1,0,0]")
            for h2 in range(2):
                a(f"v_pk_mul_f32 v[{r+2*h2}:{r+2*h2+1}], v[{rs}:{rs+1}], v[{r+2*h2}:{r+2*h2+1}] op_sel_hi:[0,1]")
            p = vST + 4 + 4*((2*sl + (j >> 1)) & 1) + 2*(j & 1)
            a(f"v_cvt_pk_bf16_f32 v{p}, v{r}, v{r+1}", f"v_cvt_pk_bf16_f32 v{p+1}, v{r+2}, v{r+3}")
            if j & 1:
                q = p - 2
                a(f"s_add_u32 s{sT0}, s{sW4}, {sl}", f"s_and_b32 s{sT0}, s{sT0}, 3", f"s_lshl_b32 s{sT0}, s{sT0}, 11",
                  f"v_permlane32_swap_b32 v{q}, v{q+2}", f"s_add_u32 s{sT0}, s{sT0}, s{sBlkOff}", f"v_permlane32_swap_b32 v{q+1}, v{q+3}")
                if j == 3: a(f"s_add_u32 s{sT0}, s{sT0}, 1024")
                a(f"buffer_store_dwordx4 v[{q}:{q+3}], v{vST}, s[{SRO}:{SRO+3}], s{sT0} offen" + ("" if "qkplain" in abl else " sc1"))
        if sl < 2:
            for j in range(4): a(f"ds_read_b128 v[{cs0+4*j}:{cs0+4*j+3}], v{vT+2+sl} offset:{SCR_CS + j*32}")
    if single: a(f"s_branch {NAME}_p1m")
    else:
        st.flush(a, sWV, vT)
        a("s_endpgm")
    st.n = 1
    a.label(f"{NAME}_addr_v")
    a(f"s_lshl_b32 s{sT0}, s{sMT}, 2", f"s_add_u32 s{sT0}, s{sT0}, s{sW4}", f"s_mul_i32 s{sT0}, s{sT0}, 1280", f"s_add_u32 s{sBlkOff}, s{sT0}, {V_OFF}",
      f"s_mov_b32 s{sT2}, 81920")
    for sl in range(4):
        a(f"s_add_u32 s{sT0}, s{sW4}, {sl}", f"s_and_b32 s{sT0}, s{sT0}, 3", f"s_lshl_b32 s{sT0}, s{sT0}, 5",
          f"s_lshl_b32 s{sT1}, s{sNTS}, 7", f"s_add_u32 s{sT0}, s{sT0}, s{sT1}")
        c, hd, d = vT, vT+1, vT+2
        a(f"v_add_u32 v{c}, s{sT0}, v{N_}", f"v_mul_u32_u24 v{hd}, 3277, v{c}", f"v_lshrrev_b32 v{hd}, 16, v{hd}",
          f"v_mul_u32_u24 v{d}, 20, v{hd}", f"v_sub_u32 v{d}, v{c}, v{d}", f"v_mul_lo_u32 v{hd}, v{hd}, s{sT2}",
          f"v_lshl_add_u32 v{hd}, v{d}, 4, v{hd}", f"v_mul_u32_u24 v{d}, 320, v{Hh}", f"v_add_u32 v{vST+sl}, v{hd}, v{d}")
    m_main(True)
    RS, MR = vCSR, vCSR + 16
    a(f"s_lshl_b32 s{sT0}, s{sW4}, 8", f"v_lshl_add_u32 v{vT+1}, v{Hh}, 5, s{sT0}")
    for j in range(4):
        a(f"ds_read_b128 v[{RS+8*j}:{RS+8*j+3}], v{vT+1} offset:{SCR_ST + j*64}", f"ds_read_b128 v[{RS+8*j+4}:{RS+8*j+7}], v{vT+1} offset:{SCR_ST + j*64 + 16}")
    for sl in range(4):
        a(f"s_add_u32 s{sT0}, s{sW4}, {sl}", f"s_and_b32 s{sT0}, s{sT0}, 3", f"s_lshl_b32 s{sT0}, s{sT0}, 7", f"v_lshl_add_u32 v{vT+2}, v{N_}, 2, s{sT0}",
          f"ds_read_b32 v{vT+8+sl}, v{vT+2} offset:{SCR_CS}")
    a("s_waitcnt lgkmcnt(4)")
    for q in range(16): a(f"v_mul_f32 v{RS+2*q}, v{RS+2*q}, v{RS+2*q+1}")
    a("s_waitcnt lgkmcnt(0)")
    for sl in range(4):
        cs = vT + 8 + sl
        for mf in range(2):
            p = vT + 4*mf
            for r8 in range(8):
                rr = 8*mf + r8
                a(f"v_mul_f32 v{ACC+16*sl+rr}, v{RS+2*rr+1}, v{ACC+16*sl+rr}")
            for r8 in range(8):
                rr = 8*mf + r8
                a(f"v_fma_f32 v{ACC+16*sl+rr}, -v{RS+2*rr}, v{cs}, v{ACC+16*sl+rr}")
            for q in range(4):
                r = ACC + 16*sl + 8*mf + 2*q
                a(f"v_cvt_pk_bf16_f32 v{p+q}, v{r}, v{r+1}")
            a(f"s_add_u32 s{sT0}, s{sBlkOff}, {mf*640}", f"buffer_store_dwordx4 v[{p}:{p+3}], v{vST+sl}, s[{SRO}:{SRO+3}], s{sT0} offen" + ("" if "vplain" in abl else " sc1"))
    if single:
        a.label(f"{NAME}_p1m")
        a("s_waitcnt vmcnt(0)")
        a.label(f"{NAME}_p1d")
        a("s_barrier", f"s_cmp_lg_u32 s{sWV}, 0", f"s_cbranch_scc1 {NAME}_p1x",
          f"s_lshl_b32 s{sT0}, s{sNT}, 8", f"s_add_u32 s{sT0}, s{sT0}, {CNT_T}", "s_mov_b64 exec, 1", f"v_mov_b32 v{vT}, s{sT0}", f"v_mov_b32 v{vT+1}, 1",
          f"global_atomic_add v{vT}, v{vT+1}, s[{sWS}:{sWS+1}] sc1", "s_mov_b64 exec, -1")
        a.label(f"{NAME}_p1x")
        a(f"s_lshl_b32 s{sT0}, s{sWV}, 6", f"v_add_u32 v0, s{sT0}, v{vLane}", f"s_branch {NAME}_p2")
    else: st.flush(a, sWV, vT)
    a.label(f"{NAME}_end")
    a("s_endpgm")
    a.label(f"{NAME}_idle")
    a(f"v_lshrrev_b32 v{vT}, 6, v0", "v_and_b32 v1, 63, v0", "s_nop 0", f"v_readfirstlane_b32 s{sWV}, v{vT}", "s_waitcnt lgkmcnt(0)")
    a(f"s_cmp_lg_u32 s2, {ZWG}", f"s_cbranch_scc1 {NAME}_st")
    srd(a, SRO, sWS, sWS+1, CNT_OFF, 24576)
    a("v_lshlrev_b32 v2, 4, v0", "v_mov_b32 v4, 0", "v_mov_b32 v5, 0", "v_mov_b32 v6, 0", "v_mov_b32 v7, 0")
    for k in range(3): a(f"buffer_store_dwordx4 v[4:7], v2, s[{SRO}:{SRO+3}], 0 offen sc1", "v_add_u32 v2, 8192, v2")
    a.label(f"{NAME}_st")
    a(f"s_mul_i32 s{sT0}, s{sMT}, 163840")
    srd(a, SRX, sX, sX+1, f"s{sT0}", 163840)
    a("v_lshrrev_b32 v2, 3, v1", "v_mul_u32_u24 v3, 1280, v2", "v_and_b32 v8, 7, v1", "v_lshl_add_u32 v3, v8, 4, v3", f"s_mul_i32 s{sT0}, s{sWV}, {16*1280}", f"s_mov_b32 s{sMask}, 0xffff0000")
    XR = 16
    for g in range(2):
        for q in range(10):
            a(f"s_add_u32 s{sT1}, s{sT0}, {g*8*1280 + q*128}", f"buffer_load_dwordx4 v[{XR+40*g+4*q}:{XR+40*g+4*q+3}], v3, s[{SRX}:{SRX+3}], s{sT1} offen")
    NT_ = 0
    if "wt" in abl:
        NT_ = 3
        srd(a, SRW, sW, sW+1, None, 640*3840)
        a(f"s_lshl_b32 s{sT1}, s{sMT}, 3", f"s_add_u32 s{sT1}, s{sT1}, s{sWV}", f"s_mul_i32 s{sT1}, s{sT1}, {5*3840}", "v_lshlrev_b32 v9, 7, v1",
          "s_mov_b32 exec_hi, 0x0003ffff")
        for k in range(3):
            a(f"buffer_load_dword v{112+k}, v9, s[{SRW}:{SRW+3}], s{sT1} offen", f"s_add_u32 s{sT1}, s{sT1}, {50*128}")
        a("s_mov_b64 exec, -1")
    srd(a, SRO, sWS, sWS+1, ST1_OFF, 2048*8)
    for g in range(2):
        A0 = 100 + 4*g
        for r in range(4): a(f"v_mov_b32 v{A0+r}, 0")
        for q in range(10):
            a(f"s_waitcnt vmcnt({19 - 10*g - q + NT_})")
            for r in range(4):
                x = XR + 40*g + 4*q + r; tp = 108 + 2*(r & 1)
                a(f"v_lshlrev_b32 v{tp}, 16, v{x}", f"v_and_b32 v{tp+1}, s{sMask}, v{x}", f"v_add_f32 v{A0}, v{A0}, v{tp}", f"v_add_f32 v{A0+1}, v{A0+1}, v{tp+1}",
                  f"v_fma_f32 v{A0+2}, v{tp}, v{tp}, v{A0+2}", f"v_fma_f32 v{A0+3}, v{tp+1}, v{tp+1}, v{A0+3}")
        a(f"v_add_f32 v{A0}, v{A0}, v{A0+1}", f"v_add_f32 v{A0+2}, v{A0+2}, v{A0+3}")
        for dpp in ("quad_perm:[1,0,3,2] row_mask:0xf bank_mask:0xf", "quad_perm:[2,3,0,1] row_mask:0xf bank_mask:0xf", "row_half_mirror row_mask:0xf bank_mask:0xf"):
            a("s_nop 1", f"v_add_f32_dpp v{A0}, v{A0}, v{A0} {dpp}", f"v_add_f32_dpp v{A0+2}, v{A0+2}, v{A0+2} {dpp}")
        m_, v_ = A0, A0 + 2
        a(f"v_mul_f32 v{m_}, {fhex(1.0/640)}, v{m_}", f"v_mul_f32 v{v_}, {fhex(1.0/640)}, v{v_}", f"v_fma_f32 v{v_}, -v{m_}, v{m_}, v{v_}", f"v_max_f32 v{v_}, 0, v{v_}",
          f"v_add_f32 v{v_}, {fhex(EPS)}, v{v_}", f"v_rsq_f32 v{m_+1}, v{v_}",
          f"s_lshl_b32 s{sT1}, s{sMT}, 7", f"s_lshl_b32 s{sT2}, s{sWV}, 4", f"s_add_u32 s{sT1}, s{sT1}, s{sT2}", f"s_add_u32 s{sT1}, s{sT1}, {8*g}", f"s_lshl_b32 s{sT1}, s{sT1}, 3",
          "v_lshlrev_b32 v9, 3, v2", "s_mov_b32 exec_lo, 0x01010101", "s_mov_b32 exec_hi, 0x01010101",
          f"buffer_store_dwordx2 v[{m_}:{m_+1}], v9, s[{SRO}:{SRO+3}], s{sT1} offen sc1", "s_mov_b64 exec, -1")
    if "ststamp" in abl:
        st.n = 1; st.mark(a); st.mark(a); st.mark(a); st.flush(a, sWV, 120); a("s_mov_b64 exec, -1")
    a("s_load_dwordx2 s[46:47], s[0:1], 56", "s_waitcnt vmcnt(0) lgkmcnt(0)", "s_barrier", f"s_cmp_lg_u32 s{sWV}, 0", f"s_cbranch_scc1 {NAME}_end2",
      f"s_lshl_b32 s{sT0}, s{sMT}, 2", "s_mov_b64 exec, 1", f"v_mov_b32 v2, s{sT0}", "v_mov_b32 v3, 1", "global_atomic_add v2, v3, s[46:47] sc1")
    if single:
        a("v_mov_b32 v2, 64", f"s_cmp_lg_u32 s2, {ZWG}", f"s_cbranch_scc1 {NAME}_zw", "global_atomic_add v2, v3, s[46:47] sc1")
        a.label(f"{NAME}_zw")
        a(f"s_mov_b32 s{sT1}, {1 << 18}")
        a.label(f"{NAME}_zp")
        a("global_load_dword v4, v2, s[46:47] sc1", "s_waitcnt vmcnt(0)", "v_cmp_eq_u32 vcc, 0, v4", f"s_cbranch_vccz {NAME}_zd",
          f"s_sub_u32 s{sT1}, s{sT1}, 1", f"s_cmp_lg_u32 s{sT1}, 0", f"s_cbranch_scc1 {NAME}_zp")
        a.label(f"{NAME}_zd")
        a("s_mov_b64 exec, -1")
    a.label(f"{NAME}_end2")
    if single: a(f"s_branch {NAME}_p2")
    else: a("s_endpgm")
    i = a.l.index(f"{NAME}_M:")
    b = Asm(); b("s_waitcnt lgkmcnt(0)"); srd(b, SRO, sWS, sWS+1, None, O_OFF)
    a.l[i+1:i+1] = b.l
    return a, kernel_desc(NAME, NV, NV), (NAME, 256, 512, 163840)
if __name__ == "__main__":
    a, d, l = gen(prefetch_code=8)
    for p in check_hazards(a.text(), NAME): print(p)
    print(len(a.l), "lines")
```

```python
from gen_common import *
NAME = "k2_attn_kernel"
def gen(stamp=None, abl=(), fused=None, single=None):
    global NAME
    NAME = (single + "_att") if single else "k2f_fused_kernel" if fused else "k2_attn_kernel"
    a = Asm(); st = (MinStamps(stamp) if 'min' in abl else WideStamps(stamp) if fused else Stamps(stamp))
    if single:
        a.label(f"{single}_p2")
        if stamp is not None and 'min' not in abl: st.n = 1
        if 'min' in abl: st.started = True; st.n = 1
    else: kernel_header(a, NAME)
    st.mark(a)
    sWS = 4
    SRKV, SRQ, SRO = 8, 12, 16
    sHead, sQB, sWV, sPa, sPb, sIt, sPass = 20, 21, 22, 23, 24, 25, 26
    sQG, sKH = 27, 35
    sMaskV = 28
    sT0, sT1, sT2, sT3 = 30, 31, 32, 33
    sBad = 38
    SRA, SRB = 40, 44
    sRs, sRd, sRty = 48, 49, 50
    vQ0 = [4, 10]; vQ1 = [8, 14]
    vS = [16, 32]; vP = [48, 56]; vO = [64, 80]
    vK0, vK1, vV0, vV1 = 96, 100, 104, 108
    vCi = [112]
    vAK0, vAK1, vAV = 144, 145, 146
    vL16, vLane, vN, vHh = 147, 148, 149, 150
    vT = 152
    vM = 168
    vR = 172
    vRp = 192
    NV = 204
    if not single: a(f"s_cmp_ge_u32 s2, 256", f"s_cbranch_scc1 {NAME}_end")
    a(f"s_load_dwordx2 s[{sWS}:{sWS+1}], s[0:1], 64")
    a(f"s_and_b32 s{sT0}, s2, 7", f"s_lshr_b32 s{sT1}, s2, 3", f"s_lshl_b32 s{sHead}, s{sT0}, 2", f"s_lshr_b32 s{sT2}, s{sT1}, 3",
      f"s_add_u32 s{sHead}, s{sHead}, s{sT2}", f"s_and_b32 s{sQB}, s{sT1}, 7")
    a(f"v_lshrrev_b32 v{vT}, 6, v0", f"v_and_b32 v{vLane}, 63, v0", f"v_lshlrev_b32 v{vL16}, 4, v{vLane}", f"v_readfirstlane_b32 s{sWV}, v{vT}",
      f"v_and_b32 v{vN}, 31, v{vLane}", f"v_lshrrev_b32 v{vHh}, 5, v{vLane}")
    for sl in range(2):
        for r in range(2): a(f"v_mov_b32 v{vQ1[sl]+r}, 0")
    a(f"s_and_b32 s{sQG}, s{sWV}, 3", f"s_lshr_b32 s{sKH}, s{sWV}, 2", f"s_mov_b32 s{sPass}, 0")
    a("s_waitcnt lgkmcnt(0)")
    SRV = 52
    sHf = 56
    a(f"s_lshr_b32 s{sT0}, s{sHead}, 1", f"s_mul_i32 s{sT0}, s{sT0}, {5*512}", f"s_and_b32 s{sHf}, s{sHead}, 1")
    srd(a, SRKV, sWS, sWS+1, f"s{sT0}", 64*40960)
    a(f"s_add_u32 s{sT0}, s{sT0}, {Q_OFF}", f"s_lshl_b32 s{sT1}, s{sQB}, 3", f"s_lshl_b32 s{sT2}, s{sQG}, 1", f"s_add_u32 s{sT1}, s{sT1}, s{sT2}",
      f"s_mul_i32 s{sT1}, s{sT1}, 40960", f"s_add_u32 s{sT0}, s{sT0}, s{sT1}")
    srd(a, SRQ, sWS, sWS+1, f"s{sT0}", 40960 + 5*512)
    a(f"s_mul_i32 s{sT0}, s{sHead}, 81920", f"s_add_u32 s{sT0}, s{sT0}, {V_OFF}")
    srd(a, SRV, sWS, sWS+1, f"s{sT0}", 81920)
    vK0o, vK1o, vK1g = 200, 201, 202
    a(f"s_mul_i32 s{sT0}, s{sHf}, 1536", f"v_add_u32 v{vK0o}, s{sT0}, v{vL16}",
      f"s_lshl_b32 s{sT0}, s{sHf}, 3", f"s_add_u32 s{sT0}, s{sT0}, 1024",
      f"v_lshrrev_b32 v{vT}, 1, v{vLane}", f"v_lshlrev_b32 v{vT}, 4, v{vT}", f"v_and_b32 v{vT+1}, 1, v{vLane}", f"v_lshl_add_u32 v{vT}, v{vT+1}, 2, v{vT}", f"v_add_u32 v{vK1o}, s{sT0}, v{vT}",
      f"v_lshlrev_b32 v{vT}, 4, v{vN}", f"v_add_u32 v{vK1g}, s{sT0}, v{vT}")
    LF = " sc1" if single else ""
    vq = Q(a, "vmcnt", 63)
    sB0, sV0 = 57, 58
    a(f"s_lshl_b32 s{sB0}, s{sKH}, 5", f"s_add_u32 s{sB0}, s{sB0}, s{sQG}",
      f"s_mul_i32 s{sPa}, s{sB0}, 40960",
      f"s_mul_i32 s{sV0}, s{sKH}, 40960", f"s_lshl_b32 s{sT0}, s{sQG}, 10", f"s_add_u32 s{sV0}, s{sV0}, s{sT0}")
    sLK0, sLK1, sVq = 59, 60, 61
    a(f"s_lshl_b32 s{sLK0}, s{sB0}, 10", f"s_lshl_b32 s{sLK1}, s{sB0}, 8", f"s_add_u32 s{sLK1}, s{sLK1}, 65536",
      f"s_mul_i32 s{sVq}, s{sKH}, 40960", f"s_lshl_b32 s{sT0}, s{sQG}, 8", f"s_add_u32 s{sVq}, s{sVq}, s{sT0}", f"s_add_u32 s{sVq}, s{sVq}, 4096")
    def kv_item(q, i):
        if i == 0: a(f"s_add_u32 m0, s{sLK0}, {q*4096}", f"s_add_u32 s{sPb}, s{sPa}, {q*4*40960}", f"buffer_load_dwordx4 v{vK0o}, s[{SRKV}:{SRKV+3}], s{sPb} offen{LF} lds")
        if i == 1: a(f"s_add_u32 m0, s{sLK1}, {q*1024}", f"s_add_u32 s{sPb}, s{sPa}, {q*4*40960}", f"buffer_load_dword v{vK1o}, s[{SRKV}:{SRKV+3}], s{sPb} offen{LF} lds")
        if i == 2: a(f"s_add_u32 m0, s{sV0}, {81920 + q*5120}", f"s_add_u32 s{sPb}, s{sV0}, {q*5120}", f"buffer_load_dwordx4 v{vL16}, s[{SRV}:{SRV+3}], s{sPb} offen{LF} lds")
        if i == 3: a(f"s_add_u32 m0, s{sVq}, {81920 + q*5120}", f"s_add_u32 s{sPb}, s{sVq}, {q*5120}", "s_mov_b64 exec, 0xffff",
                     f"buffer_load_dwordx4 v{vL16}, s[{SRV}:{SRV+3}], s{sPb} offen{LF} lds", "s_mov_b64 exec, -1")
        vq.issue(("kv", q))
    def kv_quad(q):
        for i in range(4): kv_item(q, i)
    def first_loads():
        if single:
            a(f"s_cmp_lg_u32 s{sWV}, 0", f"s_cbranch_scc1 {NAME}_tw")
            t = vT
            a(f"v_lshrrev_b32 v{t}, 1, v{vLane}", f"v_min_u32 v{t}, 2, v{t}", f"v_and_b32 v{t+1}, 1, v{vLane}",
              f"s_lshr_b32 s{sT0}, s{sHead}, 1", f"s_mul_i32 s{sT0}, s{sT0}, 5", f"v_lshlrev_b32 v{t+2}, 2, v{t+1}", f"v_add_u32 v{t+2}, s{sT0}, v{t+2}", f"v_lshrrev_b32 v{t+2}, 4, v{t+2}",
              f"s_mul_i32 s{sT0}, s{sHead}, 20", f"v_mul_u32_u24 v{t+3}, 19, v{t+1}", f"v_add_u32 v{t+3}, s{sT0}, v{t+3}", f"v_lshrrev_b32 v{t+3}, 7, v{t+3}",
              f"v_cmp_gt_u32 vcc, 2, v{t}", f"v_mul_u32_u24 v{t+4}, 5, v{t}", "s_nop 0", f"v_cndmask_b32 v{t+2}, v{t+3}, v{t+2}, vcc",
              f"v_add_u32 v{t+2}, v{t+2}, v{t+4}", f"v_lshlrev_b32 v{t+2}, 8, v{t+2}", f"v_add_u32 v{t+2}, {CNT_T}, v{t+2}", f"s_mov_b32 s{sT0}, {1 << 18}", "s_mov_b64 exec, 0x3f")
            a.label(f"{NAME}_tp")
            tsl = [x[4:] for x in abl if x.startswith("tsl_")]
            a(f"global_load_dword v{t+5}, v{t+2}, s[{sWS}:{sWS+1}] sc1", "s_waitcnt vmcnt(0)", f"v_cmp_gt_u32 vcc, 16, v{t+5}", f"s_cbranch_vccz {NAME}_tw",
              *([f"s_sleep {tsl[0]}"] if tsl else []), f"s_sub_u32 s{sT0}, s{sT0}, 1", f"s_cmp_lg_u32 s{sT0}, 0", f"s_cbranch_scc1 {NAME}_tp")
            a.label(f"{NAME}_tw")
            a("s_mov_b64 exec, -1", "s_barrier")
            st.mark(a)
        a(f"s_mul_i32 s{sT0}, s{sKH}, 40960", f"s_sub_u32 s{sT1}, 40960, s{sT0}")
        for sl, so in ((0, sT0), (1, sT1)):
            a(f"buffer_load_dwordx4 v[{vQ0[sl]}:{vQ0[sl]+3}], v{vK0o}, s[{SRQ}:{SRQ+3}], s{so} offen" + LF)
        a("s_mov_b32 exec_hi, 0")
        for sl, so in ((0, sT0), (1, sT1)):
            a(f"buffer_load_dwordx2 v[{vQ1[sl]}:{vQ1[sl]+1}], v{vK1g}, s[{SRQ}:{SRQ+3}], s{so} offen" + LF)
        a("s_mov_b32 exec_hi, -1")
        kv_quad(0)
    if not single: first_loads()
    srd(a, SRO, sWS, sWS+1, O_OFF, 32*81920)
    a(f"s_mov_b32 s{sMaskV}, 0x000fffff", f"s_mov_b32 s{sMaskV+1}, 0x000fffff")
    a(f"v_cmp_eq_u32 vcc, 20, v{vN}", f"v_mov_b32 v{vT}, 0x3f803f80", "s_nop 0", f"v_cndmask_b32 v{vT+1}, 0, v{vT}, vcc")
    for r in range(4): a(f"v_mov_b32 v{vV0+r}, v{vT+1}", f"v_mov_b32 v{vV1+r}, v{vT+1}")
    vSA = 197
    sOo = 51
    a(f"s_lshl_b32 s{sT0}, s{sQB}, 2", f"s_add_u32 s{sT0}, s{sT0}, s{sQG}", f"s_mul_i32 s{sOo}, s{sT0}, 81920",
      f"s_lshl_b32 s{sT1}, s{sKH}, 9", f"s_add_u32 s{sOo}, s{sOo}, s{sT1}", f"s_mul_i32 s{sT1}, s{sHead}, 5", f"v_lshlrev_b32 v{vT+8}, 4, v{vN}")
    for j in range(3):
        g = vT + 4
        a(f"v_add_u32 v{g}, s{sT1}, v{vHh}")
        if j: a(f"v_add_u32 v{g}, {2*j}, v{g}")
        a(f"v_lshrrev_b32 v{g+1}, 3, v{g}", f"v_lshlrev_b32 v{g+1}, 2, v{g+1}", f"v_bfe_u32 v{g+2}, v{g}, 2, 1", f"v_lshl_add_u32 v{g+1}, v{g+2}, 1, v{g+1}",
          f"v_and_b32 v{g+2}, 1, v{g}", f"v_add_u32 v{g+1}, v{g+1}, v{g+2}", f"v_lshl_add_u32 v{g+1}, v{g+1}, 10, v{vT+8}",
          f"v_bfe_u32 v{g+2}, v{g}, 1, 1", f"v_lshl_add_u32 v{vSA+j}, v{g+2}, 3, v{g+1}")
    def reset_addr():
        a(f"s_lshl_b32 s{sT0}, s{sKH}, 15", f"v_add_u32 v{vAK0}, s{sT0}, v{vL16}",
          f"s_lshl_b32 s{sT0}, s{sKH}, 13", f"s_add_u32 s{sT0}, s{sT0}, 65536", f"v_lshlrev_b32 v{vAK1}, 3, v{vN}", f"v_add_u32 v{vAK1}, s{sT0}, v{vAK1}",
          f"s_mul_i32 s{sT0}, s{sKH}, 40960", f"s_add_u32 s{sT0}, s{sT0}, 81920", f"v_mul_u32_u24 v{vAV}, 320, v{vHh}", f"v_lshl_add_u32 v{vAV}, v{vN}, 4, v{vAV}", f"v_add_u32 v{vAV}, s{sT0}, v{vAV}")
    def rdK0(off): a(f"ds_read_b128 v[{vK0}:{vK0+3}], v{vAK0} offset:{off}")
    def rdK1(off): a(f"ds_read_b64 v[{vK1}:{vK1+1}], v{vAK1} offset:{off}")
    def rdV(off):
        a(f"s_mov_b64 exec, s[{sMaskV}:{sMaskV+1}]", f"ds_read_b128 v[{vV0}:{vV0+3}], v{vAV} offset:{off}", f"ds_read_b128 v[{vV1}:{vV1+3}], v{vAV} offset:{off+640}", "s_mov_b64 exec, -1")
    def QK0(sl, ci): a(f"v_mfma_f32_32x32x16_bf16 v[{vS[sl]}:{vS[sl]+15}], v[{vK0}:{vK0+3}], v[{vQ0[sl]}:{vQ0[sl]+3}], {ci(sl)}")
    def QK1(sl): a(f"v_mfma_f32_32x32x8_bf16 v[{vS[sl]}:{vS[sl]+15}], v[{vK1}:{vK1+1}], v[{vQ1[sl]}:{vQ1[sl]+1}], v[{vS[sl]}:{vS[sl]+15}]")
    def PV(sl, half):
        vreg = vV0 if half == 0 else vV1
        a(f"v_mfma_f32_32x32x16_bf16 v[{vO[sl]}:{vO[sl]+15}], v[{vreg}:{vreg+3}], v[{vP[sl]+4*half}:{vP[sl]+4*half+3}], v[{vO[sl]}:{vO[sl]+15}]")
    def grp(sl, g):
        b = vS[sl] + 4*g
        for i in range(4): a(f"v_exp_f32 v{b+i}, v{b+i}")
        a(f"v_cvt_pk_bf16_f32 v{vP[sl]+2*g}, v{b}, v{b+1}", f"v_cvt_pk_bf16_f32 v{vP[sl]+2*g+1}, v{b+2}, v{b+3}")
    def repack_setup():
        u = f"{NAME}_rp"
        srd(a, SRA, sWS, sWS+1, None, 0)
        for r in range(5): a(f"v_mov_b32 v{vRp+r}, 0")
        a(f"s_mov_b32 s{sRs}, 0", f"s_mov_b32 s{sRd}, 0")
        a(f"s_lshl_b32 s{sT0}, s{sWV}, 8", f"s_add_u32 s{sT0}, s{sT0}, s2", f"s_mov_b32 s{sRty}, 0",
          f"s_cmp_ge_u32 s{sT0}, 1184", f"s_cbranch_scc1 {u}_done")
        a(f"s_cmp_ge_u32 s{sT0}, 640", f"s_cbranch_scc1 {u}_b")
        a(f"s_load_dwordx2 s[{SRA}:{SRA+1}], s[0:1], 32", f"s_mul_i32 s{sT1}, s{sT0}, 1639", f"s_lshr_b32 s{sT1}, s{sT1}, 16",
          f"s_mul_i32 s{sT2}, s{sT1}, 40", f"s_sub_u32 s{sT2}, s{sT0}, s{sT2}",
          f"s_mul_i32 s{sRs}, s{sT2}, {16*3072}", f"s_mul_i32 s{sT3}, s{sT1}, 192", f"s_add_u32 s{sRs}, s{sRs}, s{sT3}",
          f"s_mul_i32 s{sRd}, s{sT1}, 122880", f"s_mul_i32 s{sT3}, s{sT2}, 3072", f"s_add_u32 s{sRd}, s{sRd}, s{sT3}", f"s_add_u32 s{sRd}, s{sRd}, {W1_OFF}")
        for r in range(3):
            a(f"v_add_u32 v{vT}, {64*r}, v{vLane}", f"v_mul_u32_u24 v{vT+1}, 5462, v{vT}", f"v_lshrrev_b32 v{vT+1}, 16, v{vT+1}",
              f"v_mul_u32_u24 v{vT+2}, 12, v{vT+1}", f"v_sub_u32 v{vT+2}, v{vT}, v{vT+2}", f"v_mul_u32_u24 v{vT+1}, 3072, v{vT+1}", f"v_lshl_add_u32 v{vRp+r}, v{vT+2}, 4, v{vT+1}")
        a("s_waitcnt lgkmcnt(0)", f"s_and_b32 s{SRA+1}, s{SRA+1}, 0xffff", f"s_mov_b32 s{SRA+2}, {640*3072}", f"s_mov_b32 s{SRA+3}, 0x20000")
        a(f"s_mov_b32 s{sRty}, 3", f"s_branch {u}_done")
        a.label(f"{u}_b")
        a(f"s_cmp_ge_u32 s{sT0}, 1024", f"s_cbranch_scc1 {u}_c")
        a(f"s_load_dwordx2 s[{SRA}:{SRA+1}], s[0:1], 40", f"s_sub_u32 s{sT0}, s{sT0}, 640", f"s_mul_i32 s{sT1}, s{sT0}, 1366", f"s_lshr_b32 s{sT1}, s{sT1}, 16",
          f"s_mul_i32 s{sT2}, s{sT1}, 48", f"s_sub_u32 s{sT2}, s{sT0}, s{sT2}", f"s_mul_i32 s{sRd}, s{sT1}, 245760", f"s_add_u32 s{sRd}, s{sRd}, {W2_OFF}",
          f"s_mov_b32 s{SRA+2}, {1536*1280}", f"s_branch {u}_bc")
        a.label(f"{u}_c")
        a(f"s_load_dwordx2 s[{SRA}:{SRA+1}], s[0:1], 16", f"s_sub_u32 s{sT0}, s{sT0}, 1024", f"s_mul_i32 s{sT1}, s{sT0}, 3277", f"s_lshr_b32 s{sT1}, s{sT1}, 16",
          f"s_mul_i32 s{sT2}, s{sT1}, 20", f"s_sub_u32 s{sT2}, s{sT0}, s{sT2}", f"s_mul_i32 s{sRd}, s{sT1}, 102400", f"s_add_u32 s{sRd}, s{sRd}, {WO_OFF}",
          f"s_mov_b32 s{SRA+2}, {640*1280}")
        a.label(f"{u}_bc")
        a(f"s_mul_i32 s{sRs}, s{sT2}, {32*1280}", f"s_mul_i32 s{sT3}, s{sT1}, 160", f"s_add_u32 s{sRs}, s{sRs}, s{sT3}",
          f"s_mul_i32 s{sT3}, s{sT2}, 5120", f"s_add_u32 s{sRd}, s{sRd}, s{sT3}")
        for r in range(5):
            a(f"v_add_u32 v{vT}, {64*r}, v{vLane}", f"v_mul_u32_u24 v{vT+1}, 6554, v{vT}", f"v_lshrrev_b32 v{vT+1}, 16, v{vT+1}",
              f"v_mul_u32_u24 v{vT+2}, 10, v{vT+1}", f"v_sub_u32 v{vT+2}, v{vT}, v{vT+2}", f"v_mul_u32_u24 v{vT+1}, 1280, v{vT+1}", f"v_lshl_add_u32 v{vRp+r}, v{vT+2}, 4, v{vT+1}")
        a("s_waitcnt lgkmcnt(0)", f"s_and_b32 s{SRA+1}, s{SRA+1}, 0xffff", f"s_mov_b32 s{SRA+3}, 0x20000")
        a(f"s_mov_b32 s{sRty}, 5")
        a.label(f"{u}_done")
    def repack_loads(ver=""):
        u = f"{NAME}_rl{ver}"
        a(f"s_cmp_eq_u32 s{sRty}, 0", f"s_cbranch_scc1 {u}_done")
        for r in range(3): a(f"buffer_load_dwordx4 v[{vR+4*r}:{vR+4*r+3}], v{vRp+r}, s[{SRA}:{SRA+3}], s{sRs} offen")
        a(f"s_cmp_eq_u32 s{sRty}, 3", f"s_cbranch_scc1 {u}_done")
        for r in range(3, 5): a(f"buffer_load_dwordx4 v[{vR+4*r}:{vR+4*r+3}], v{vRp+r}, s[{SRA}:{SRA+3}], s{sRs} offen")
        a.label(f"{u}_done")
    def repack_stores(ver=""):
        u = f"{NAME}_rs{ver}"
        a(f"s_cmp_eq_u32 s{sRty}, 0", f"s_cbranch_scc1 {u}_done")
        a("s_waitcnt vmcnt(0)")
        for r in range(3): a(f"buffer_store_dwordx4 v[{vR+4*r}:{vR+4*r+3}], v{vL16}, s[{SRB}:{SRB+3}], s{sRd} offen offset:{r*1024} sc1")
        a(f"s_cmp_eq_u32 s{sRty}, 3", f"s_cbranch_scc1 {u}_done")
        a(f"buffer_store_dwordx4 v[{vR+12}:{vR+15}], v{vL16}, s[{SRB}:{SRB+3}], s{sRd} offen offset:3072 sc1",
          f"s_add_u32 s{sRd}, s{sRd}, 4096", f"buffer_store_dwordx4 v[{vR+16}:{vR+19}], v{vL16}, s[{SRB}:{SRB+3}], s{sRd} offen sc1")
        a.label(f"{u}_done")
    lab = f"{NAME}_f"
    ci = lambda sl: "0"
    reset_addr()
    for sl in range(2):
        for r in range(16): a(f"v_mov_b32 v{vO[sl]+r}, 0")
    for r in range(8): a(f"v_mov_b32 v{vP[1]+r}, 0")
    if "norepack" not in abl:
        repack_setup(); srd(a, SRB, sWS, sWS+1, None, WS_END)
    if single: first_loads()
    st.mark(a); vq.wait(("kv", 0)); a("s_barrier"); st.mark(a)
    rdK0(0); rdK1(0); rdV(0)
    a("s_waitcnt lgkmcnt(0)")
    QK0(0, ci); QK1(0)
    a("s_nop 7", "s_nop 3")
    YSW = int(([x[4:] for x in abl if x.startswith("ysw_")] or ["4"])[0])
    def block(u, pre=None, hook=None, young=False):
        QK0(1, ci); rdK0((u+1)*1024); grp(0, 0)
        PV(1, 0); a("s_waitcnt lgkmcnt(0)"); grp(0, 1)
        QK1(1); rdK1((u+1)*256); grp(0, 2)
        PV(1, 1); rdV(u*1280); grp(0, 3)
        QK0(0, ci); a("s_waitcnt lgkmcnt(1)"); grp(1, 0)
        PV(0, 0)
        tog = "noprio2" not in abl and (not young or u >= YSW)
        if tog: a("s_setprio 0")
        if pre and len(pre) > 0: pre[0]()
        grp(1, 1)
        QK1(0); a("s_waitcnt lgkmcnt(0)"); grp(1, 2)
        PV(0, 1)
        if tog: a("s_setprio 1")
        if pre and len(pre) > 1: pre[1]()
        grp(1, 3)
        if hook: hook()
    def main_part(ver, young):
        def adv_addr(): a(f"v_add_u32 v{vAK0}, {8*1024}, v{vAK0}", f"v_add_u32 v{vAK1}, {8*256}, v{vAK1}", f"v_add_u32 v{vAV}, {8*1280}, v{vAV}")
        items = [(q, i) for q in range(1, 8) for i in range(4)]
        need = {3: 1, 7: 2, 11: 4}
        for b in range(16):
            if b in need: vq.wait(("kv", need[b])); a("s_barrier")
            if b == 12 and "norepack" not in abl: repack_loads(ver)
            n = 2 if b < 14 else 0
            pre = [(lambda it=items.pop(0): kv_item(*it)) for _ in range(n)]
            block(b % 8, pre=pre, young=young)
            if b % 8 == 7: adv_addr()
        assert not items
        a(f"s_mov_b32 s{sIt}, 2")
        if fused: a(f"v_and_b32 v2, 15, v{vLane}", f"v_lshlrev_b32 v2, 8, v2", f"v_add_u32 v2, {CNT_R}, v2", "v_mov_b32 v3, 0")
        a.label(f"{lab}{ver}_loop")
        a(f"s_cmp_lg_u32 s{sIt}, 2", f"s_cbranch_scc1 {lab}{ver}_nw2", "s_waitcnt vmcnt(0)", "s_barrier")
        if "norepack" not in abl: repack_stores(ver)
        a(f"s_branch {lab}{ver}_go")
        a.label(f"{lab}{ver}_nw2")
        if fused:
            a("s_waitcnt vmcnt(0)", "s_barrier", f"s_cmp_lg_u32 s{sWV}, 0", f"s_cbranch_scc1 {lab}{ver}_go")
            a(f"s_and_b32 s{sT0}, s2, 15", f"s_lshl_b32 s{sT0}, s{sT0}, 8", f"s_add_u32 s{sT0}, s{sT0}, {CNT_R}", "s_mov_b64 exec, 1",
              f"v_mov_b32 v{vT}, s{sT0}", f"v_mov_b32 v{vT+1}, 1", f"global_atomic_add v{vT}, v{vT+1}, s[{sWS}:{sWS+1}] sc1", "s_mov_b64 exec, -1")
        a.label(f"{lab}{ver}_go")
        def hook_rload():
            a(f"s_cmp_lg_u32 s{sIt}, 3", f"s_cbranch_scc1 {lab}{ver}_h1",
              f"v_and_b32 v{vT}, 15, v{vLane}", f"v_lshlrev_b32 v{vT}, 8, v{vT}", f"v_add_u32 v{vT}, {CNT_R}, v{vT}", f"global_load_dword v{vT+1}, v{vT}, s[{sWS}:{sWS+1}] sc1")
            a.label(f"{lab}{ver}_h1")
        def hook_pf():
            a(f"s_cmp_lg_u32 s{sIt}, 3", f"s_cbranch_scc1 {lab}{ver}_h2", "s_waitcnt vmcnt(0)", f"v_cmp_gt_u32 vcc, {0 if 'forcepf' in abl else 16}, v{vT+1}", f"s_cbranch_vccnz {lab}{ver}_h2")
            if "pfcount" in abl:
                a("s_load_dwordx2 s[60:61], s[0:1], 56", "s_waitcnt lgkmcnt(0)", "s_mov_b64 exec, 1", f"v_mov_b32 v{vT+8}, 0", f"v_mov_b32 v{vT+9}, 1", f"global_atomic_add v{vT+8}, v{vT+9}, s[60:61]", "s_mov_b64 exec, -1")
            a(f"s_lshr_b32 s{sT0}, s2, 3", f"s_lshl_b32 s{sT0}, s{sT0}, 3", f"s_add_u32 s{sT0}, s{sT0}, s{sWV}", f"s_and_b32 s{sT1}, s2, 1")
            a(f"s_mul_i32 s{sT2}, s{sT0}, {30*128}", f"s_mul_i32 s{sT3}, s{sT1}, {8*122880}", f"s_add_u32 s{sT3}, s{sT3}, {W1_OFF}", f"s_add_u32 s{sT3}, s{sT3}, s{sT2}",
              f"v_lshlrev_b32 v{vT}, 7, v{vN}", f"v_add_u32 v{vT+2}, s{sT3}, v{vT}",
              f"s_mul_i32 s{sT3}, s{sT1}, {4*245760}", f"s_add_u32 s{sT3}, s{sT3}, {W2_OFF}", f"s_add_u32 s{sT3}, s{sT3}, s{sT2}", f"v_add_u32 v{vT+3}, s{sT3}, v{vT}",
              f"v_cmp_eq_u32 vcc, 0, v{vHh}", "s_nop 1", f"v_cndmask_b32 v{vT+2}, v{vT+3}, v{vT+2}, vcc",
              "s_mov_b32 exec_lo, 0x3fffffff", "s_mov_b32 exec_hi, 0x3fffffff", f"global_load_dword v{vT+4}, v{vT+2}, s[{sWS}:{sWS+1}]",
              f"s_mul_i32 s{sT2}, s{sT0}, {13*128}", f"s_min_u32 s{sT2}, s{sT2}, {409600 - 13*128}", f"s_mul_i32 s{sT3}, s{sT1}, 409600", f"s_add_u32 s{sT3}, s{sT3}, {WO_OFF}", f"s_add_u32 s{sT3}, s{sT3}, s{sT2}",
              "s_mov_b64 exec, -1", f"v_add_u32 v{vT+2}, s{sT3}, v{vT}", "s_mov_b64 exec, 0x1fff", f"global_load_dword v{vT+5}, v{vT+2}, s[{sWS}:{sWS+1}]", "s_mov_b64 exec, -1")
            a.label(f"{lab}{ver}_h2")
        def hook_rlook():
            a(f"s_cmp_lg_u32 s{sIt}, 3", f"s_cbranch_scc1 {lab}{ver}_h3", f"global_load_dword v3, v2, s[{sWS}:{sWS+1}] sc1")
            a.label(f"{lab}{ver}_h3")
        for u in range(8):
            hk = None
            if fused and u == 6: hk = hook_rlook
            if fused and "wpf" in abl and u in (2, 5): hk = hook_rload if u == 2 else hook_pf
            block(u, hook=hk, young=young)
        adv_addr()
        a(f"s_add_u32 s{sIt}, s{sIt}, 1", f"s_cmp_lt_u32 s{sIt}, 4", f"s_cbranch_scc1 {lab}{ver}_loop")
    if "twoprio" not in abl:
        main_part("", False)
    else:
        ops0 = list(vq.ops)
        a(f"s_cmp_ge_u32 s{sWV}, 4", f"s_cbranch_scc1 {lab}_young")
        main_part("o", False)
        a(f"s_branch {lab}_tail")
        a.label(f"{lab}_young")
        a("s_setprio 1")
        vq.ops = list(ops0)
        main_part("y", True)
        a.label(f"{lab}_tail")
    a("s_nop 1"); PV(1, 0); PV(1, 1)
    st.mark(a)
    if not fused: a("s_barrier")
    a(f"s_mul_i32 s{sT0}, s{sWV}, 3072", f"v_add_u32 v{vT}, s{sT0}, v{vL16}", f"s_xor_b32 s{sT1}, s{sWV}, 4", f"s_mul_i32 s{sT1}, s{sT1}, 3072", f"v_add_u32 v{vT+1}, s{sT1}, v{vL16}",
      "s_nop 7", "s_nop 3")
    for q in range(3): a(f"ds_write_b128 v{vT}, v[{vO[1]+4*q}:{vO[1]+4*q+3}] offset:{q*1024}")
    if fused:
        a(f"v_mov_b32 v{vT+2}, 140000", f"v_mov_b32 v{vT+6}, 0", f"v_mov_b32 v{vT+7}, 0", f"ds_write_b64 v{vT+2}, v[{vT+6}:{vT+7}]")
    a("s_waitcnt lgkmcnt(0)", "s_barrier")
    for q in range(3): a(f"ds_read_b128 v[{vO[1]+4*q}:{vO[1]+4*q+3}], v{vT+1} offset:{q*1024}")
    O = vO[0]; P = vP[0]
    for q in range(3):
        a(f"s_waitcnt lgkmcnt({2-q})")
        for r in range(4*q, 4*q+4): a(f"v_add_f32 v{O+r}, v{O+r}, v{vO[1]+r}")
    a.label(f"{NAME}_norm")
    a(f"v_mov_b32 v{vT}, v{O+8}", f"v_mov_b32 v{vT+1}, v{O+8}", "s_nop 1", f"v_permlane32_swap_b32 v{vT}, v{vT+1}", "s_nop 1")
    l = vT + 1
    a(f"v_rcp_f32 v{vT+2}, v{l}", f"v_mov_b32 v{vT+3}, 0")
    for r in range(12): a(f"v_mul_f32 v{O+r}, v{vT+2}, v{O+r}")
    for j in range(3):
        a(f"v_cvt_pk_bf16_f32 v{P+2*j}, v{O+4*j}, v{O+4*j+1}", f"v_cvt_pk_bf16_f32 v{P+2*j+1}, v{O+4*j+2}, v{O+4*j+3}")
        if j == 2: a("s_mov_b32 exec_hi, 0")
        a(f"buffer_store_dwordx2 v[{P+2*j}:{P+2*j+1}], v{vSA+j}, s[{SRO}:{SRO+3}], s{sOo} offen" + (" sc1" if fused else ""))
    a("s_mov_b64 exec, -1")
    a(f"s_cmp_lg_u32 s{sPass}, 0", f"s_cbranch_scc1 {NAME}_fin")
    for r in range(12): a(f"v_fma_f32 v{vT+3}, v{O+r}, 0, v{vT+3}")
    a(f"v_fma_f32 v{vT+3}, v{l}, 0, v{vT+3}", f"v_cmp_gt_f32 vcc, {fhex(2.0**-40)}, v{l}", f"v_cmp_u_f32 s[{sBad}:{sBad+1}], v{vT+3}, v{vT+3}", "s_nop 1",
      f"s_or_b64 s[{sBad}:{sBad+1}], s[{sBad}:{sBad+1}], vcc",
      f"v_cmp_lt_f32 vcc, {fhex(2.0**100)}, v{l}", "s_nop 1", f"s_or_b64 s[{sBad}:{sBad+1}], s[{sBad}:{sBad+1}], vcc")
    if "forcefb" in abl: a(f"s_mov_b64 s[{sBad}:{sBad+1}], 1")
    a(f"s_cmp_eq_u64 s[{sBad}:{sBad+1}], 0", f"s_cbranch_scc1 {NAME}_fin")
    sKo, sVo = 57, 58
    a(f"s_mov_b32 s{sPass}, 1", f"v_mov_b32 v{vM}, 0xff800000",
      f"v_mul_u32_u24 v{vAV}, 320, v{vHh}", f"v_lshl_add_u32 v{vAV}, v{vN}, 4, v{vAV}", f"s_mov_b32 s{sIt}, 0", f"s_mov_b32 s{sKo}, 0")
    def gK():
        a(f"buffer_load_dwordx4 v[{vK0}:{vK0+3}], v{vK0o}, s[{SRKV}:{SRKV+3}], s{sKo} offen{LF}", f"buffer_load_dwordx2 v[{vK1}:{vK1+1}], v{vK1g}, s[{SRKV}:{SRKV+3}], s{sKo} offen{LF}")
    a.label(f"{NAME}_maxloop")
    gK()
    a("s_waitcnt vmcnt(0)")
    QK0(0, ci); QK1(0)
    a("s_nop 15")
    for r in range(0, 16, 2): a(f"v_max3_f32 v{vM}, v{vM}, v{vS[0]+r}, v{vS[0]+r+1}")
    a(f"s_add_u32 s{sKo}, s{sKo}, 40960", f"s_add_u32 s{sIt}, s{sIt}, 1", f"s_cmp_lt_u32 s{sIt}, 64", f"s_cbranch_scc1 {NAME}_maxloop")
    a(f"v_mov_b32 v{vM+1}, v{vM}", "s_nop 1", f"v_permlane32_swap_b32 v{vM}, v{vM+1}", "s_nop 1", f"v_max_f32 v{vM}, v{vM}, v{vM+1}")
    for r in range(16): a(f"v_sub_f32 v{vCi[0]+r}, 0, v{vM}", f"v_mov_b32 v{O+r}, 0")
    a(f"s_mov_b32 s{sIt}, 0", f"s_mov_b32 s{sKo}, 0", f"s_mov_b32 s{sVo}, 0")
    a.label(f"{NAME}_exploop")
    gK()
    a(f"s_mov_b64 exec, s[{sMaskV}:{sMaskV+1}]",
      f"buffer_load_dwordx4 v[{vV0}:{vV0+3}], v{vAV}, s[{SRV}:{SRV+3}], s{sVo} offen{LF}", f"buffer_load_dwordx4 v[{vV1}:{vV1+3}], v{vAV}, s[{SRV}:{SRV+3}], s{sVo} offen offset:640{LF}",
      "s_mov_b64 exec, -1", "s_waitcnt vmcnt(0)")
    QK0(0, lambda sl: f"v[{vCi[0]}:{vCi[0]+15}]"); QK1(0)
    a("s_nop 15")
    for g in range(4): grp(0, g)
    a("s_nop 1"); PV(0, 0); PV(0, 1)
    a(f"s_add_u32 s{sKo}, s{sKo}, 40960", f"s_add_u32 s{sVo}, s{sVo}, 1280", f"s_add_u32 s{sIt}, s{sIt}, 1", f"s_cmp_lt_u32 s{sIt}, 64", f"s_cbranch_scc1 {NAME}_exploop")
    a("s_nop 15", f"s_branch {NAME}_norm")
    a.label(f"{NAME}_fin")
    if fused: fused(a, st, locals())
    else: st.flush(a, sWV, vT)
    a.label(f"{NAME}_end")
    a("s_endpgm")
    return a, kernel_desc(NAME, 256 if fused else NV, 256 if fused else NV), (NAME, 256, 512, 163840)
if __name__ == "__main__":
    a, d, l = gen()
    for p in check_hazards(a.text(), NAME): print(p)
    print(len(a.l), "lines")
```
